```python
import torch

def _softmax(x, axis=-1):
    return torch.softmax(x, dim=axis)
def _gelu(x):
    return torch.nn.functional.gelu(x, approximate="tanh")
def _silu(x):
    return torch.nn.functional.silu(x)
def _sigmoid(x):
    return torch.sigmoid(x)
def _layernorm(x, axis=-1, eps=1e-5):
    m = x.mean(dim=axis, keepdim=True)
    v = x.var(dim=axis, keepdim=True, unbiased=False)
    return (x - m) / torch.sqrt(v + eps)
def _scatter_add(tgt, idx, src, axis=0):
    return tgt.clone().index_add_(axis, idx, src)
def _segment_sum(src, seg, n):
    out = torch.zeros((n,) + src.shape[1:], dtype=src.dtype)
    return out.index_add_(0, seg, src)
def _pad(x, pw):
    flat = tuple(v for pair in reversed(pw) for v in pair)
    return torch.nn.functional.pad(x, flat)

kernel_name = 'gated_mix__softmax_full_mha__dense_activation_silu__prompt'

def setup_inputs():

    _w = (lambda a: (lambda t: t.to(torch.bfloat16) if t.is_floating_point() else t)(torch.as_tensor(a)))
    def _A_setup():
        B, S, D = 1, 2048, 512
        return {
            "x": _w((lambda *s: torch.randn(*s, dtype=torch.bfloat16) * 0.05)(B, S, D)),
            "wqkv": _w((lambda *s: torch.randn(*s, dtype=torch.bfloat16) * 0.8)(D, 3 * D)),
            "wo": _w((lambda *s: torch.randn(*s, dtype=torch.bfloat16) * 0.05)(D, D)),
        }
    _A_in = _A_setup()

    def _B_setup():
        B, S, D, F = 1, 2048, 512, 1792
        return {
            "x": _w((lambda *s: torch.randn(*s, dtype=torch.bfloat16) * 0.05)(B, S, D)),
            "w1": _w((lambda *s: torch.randn(*s, dtype=torch.bfloat16) * 3.2)(D, F) * (D ** -0.5)),
            "w2": _w((lambda *s: torch.randn(*s, dtype=torch.bfloat16) * 0.8)(F, D) * (F ** -0.5)),
        }
    _B_in = _B_setup()

    return {
        "A_x": _A_in["x"],
        "A_wqkv": _A_in["wqkv"],
        "A_wo": _A_in["wo"],
        "B_x": _B_in["x"],
        "B_w1": _B_in["w1"],
        "B_w2": _B_in["w2"],
        "gate_w": _w((lambda *s: torch.randn(*s, dtype=torch.bfloat16) * 0.05)(512) * 16.0),
    }

def reference(A_x, A_wqkv, A_wo, B_x, B_w1, B_w2, gate_w):
    def _A_ref(x, wqkv, wo):
        B, S, D = x.shape
        H = 32; Dh = D // H
        qkv = (lambda x, *d: x.permute(*d))((x @ wqkv).reshape(B, S, 3, H, Dh), 2, 0, 3, 1, 4)
        q, k, v = qkv[0], qkv[1], qkv[2]
        scale = Dh ** -0.5
        scores = torch.einsum("bhqd,bhkd->bhqk", q, k) * scale
        p = _softmax(scores, axis=-1)
        o = torch.einsum("bhqk,bhkd->bhqd", p, v)
        return (lambda x, *d: x.permute(*d))(o, 0, 2, 1, 3).reshape(B, S, D) @ wo

    def _B_ref(x, w1, w2):
        h = torch.einsum("bsd,df->bsf", x, w1)
        h = _silu(h)
        out = torch.einsum("bsf,fd->bsd", h, w2)
        return out

    x = A_x
    g = _sigmoid((x * gate_w).sum(-1, keepdims=True))
    a = _A_ref(x, A_wqkv, A_wo)
    b = _B_ref(x, B_w1, B_w2)
    return g * a + (1 - g) * b
```

```python
import re

class Asm:
    def __init__(self):
        self.lines = []
    def __call__(self, s):
        for l in s.strip("\n").split("\n"):
            self.lines.append("  " + l.strip())
    def label(self, name):
        self.lines.append(name + ":")
    def raw(self, s):
        self.lines.append(s)
    def text(self):
        return "\n".join(self.lines) + "\n"

def vr(b, n=1):
    return f"v{b}" if n == 1 else f"v[{b}:{b+n-1}]"
def sr(b, n=1):
    return f"s{b}" if n == 1 else f"s[{b}:{b+n-1}]"

TRANS = ("v_exp_f32", "v_log_f32", "v_rcp_f32", "v_rsq_f32", "v_sqrt_f32", "v_sin_f32", "v_cos_f32", "v_exp_f16", "v_rcp_f16")
_reg = re.compile(r"^(-|abs\()?([vsa])(?:(\d+)|\[(\d+):(\d+)\])\)?$")

def parse_op(tok):
    tok = tok.strip()
    tok = tok.replace("|", "")
    m = _reg.match(tok)
    if m:
        k = m.group(2)
        if m.group(3) is not None:
            return [(k, int(m.group(3)))]
        return [(k, i) for i in range(int(m.group(4)), int(m.group(5)) + 1)]
    if tok in ("vcc",):
        return [("s", 106), ("s", 107)]
    if tok == "vcc_lo": return [("s", 106)]
    if tok == "vcc_hi": return [("s", 107)]
    if tok == "exec":
        return [("x", 0)]
    if tok == "m0":
        return [("m", 0)]
    return []

class Ins:
    pass

def decode(line):
    s = line.split(";")[0].strip()
    if not s or s.endswith(":") or s.startswith("."):
        return None
    parts = s.split(None, 1)
    op = parts[0]
    rest = parts[1] if len(parts) > 1 else ""
    ops = []
    cur = ""
    depth = 0
    for ch in rest:
        if ch == "[": depth += 1
        if ch == "]": depth -= 1
        if ch == "," and depth == 0:
            ops.append(cur.strip()); cur = ""
        else:
            cur += ch
    if cur.strip():
        ops.append(cur.strip())
    mods = ""
    if ops:
        last = ops[-1].split(None, 1)
        if len(last) > 1:
            ops[-1] = last[0]; mods = last[1]
    I = Ins(); I.op = op; I.ops = ops; I.mods = mods; I.text = s
    I.w = []; I.r = []; I.cls = "other"; I.srcc = []; I.srcab = []
    P = [parse_op(o) for o in ops]
    base = op.replace("_e32", "").replace("_e64", "").replace("_sdwa", "").replace("_dpp", "")
    I.base = base
    if op.startswith("v_mfma"):
        I.cls = "mfma"; I.w = P[0]; I.srcab = P[1] + P[2]; I.srcc = P[3]; I.r = I.srcab + I.srcc
        I.passes = 8 if "32x32x16" in op else (4 if "16x16x32" in op else None)
        assert I.passes, op
    elif op.startswith("v_cmp"):
        I.cls = "valu"; I.w = P[0]; I.r = sum(P[1:], [])
    elif base in ("v_readfirstlane_b32", "v_readlane_b32"):
        I.cls = "valu"; I.w = P[0]; I.r = sum(P[1:], [])
    elif base.startswith("v_permlane") and "swap" in base:
        I.cls = "valu"; I.w = P[0] + P[1]; I.r = P[0] + P[1]
    elif base in ("v_add_co_u32", "v_addc_co_u32", "v_sub_co_u32", "v_subb_co_u32"):
        I.cls = "valu"; I.w = P[0] + P[1]; I.r = sum(P[2:], [])
    elif op.startswith("v_"):
        I.cls = "valu"; I.w = P[0]; I.r = sum(P[1:], [])
        if base in ("v_fmac_f32", "v_pk_fmac_f16", "v_dot2c_f32_bf16", "v_dot2c_f32_f16") or "UNUSED_PRESERVE" in mods:
            I.r = I.r + P[0]
        if base == "v_cndmask_b32" and len(ops) == 3:
            I.r = I.r + parse_op("vcc")
    elif op.startswith("ds_"):
        I.cls = "ds"
        if "read" in op or "permute" in op or "swizzle" in op:
            I.w = P[0]; I.r = sum(P[1:], [])
        else:
            I.r = sum(P, [])
    elif op.startswith("buffer_") or op.startswith("global_"):
        I.cls = "vmem"
        if op in ("buffer_wbl2", "buffer_inv"):
            pass
        elif "lds" in mods.split() or "_lds_" in op:
            I.r = sum(P, []) + [("m", 0)]; I.ldsdma = True
        elif "load" in op:
            I.w = P[0]; I.r = sum(P[1:], [])
        elif "atomic" in op:
            I.r = sum(P, [])
            if "sc0" in mods.split():
                I.w = P[0]
        else:
            I.r = sum(P, [])
            I.store_data = P[0] if op.startswith("buffer_") else P[1]
    elif op.startswith("s_load") or op.startswith("s_buffer_load") or op in ("s_memtime", "s_memrealtime") or op.startswith("s_atomic"):
        I.cls = "smem"; I.w = P[0]; I.r = sum(P[1:], [])
    elif op == "s_waitcnt":
        I.cls = "wait"
    elif op == "s_nop":
        I.cls = "nop"
    elif op.startswith("s_cmp") or op.startswith("s_cbranch") or op in ("s_branch", "s_barrier", "s_endpgm", "s_setprio", "s_sleep"):
        I.cls = "salu"; I.r = sum(P, [])
    elif op.startswith("s_"):
        I.cls = "salu"; I.w = P[0]; I.r = sum(P[1:], [])
        if "saveexec" in op:
            I.w = I.w + [("x", 0)]
    return I

def check(lines, name="", verbose=True):
    ins = [(n, decode(l)) for n, l in enumerate(lines)]
    ins = [(n, i) for n, i in ins if i is not None]
    probs = []
    pos = 0
    hist = []
    vm = []; lg = []
    for n, I in ins:
        W = set(I.w); R = set(I.r)
        def need(d, why, P):
            dist = pos - P[0] - 1
            if dist < d:
                probs.append(f"{name}:{n}: need {d} ws have {dist} [{why}]: '{P[1].text}' -> '{I.text}'")
        for P in reversed(hist[-24:]):
            J = P[1]; JW = set(J.w)
            if J.cls == "valu":
                vw = {x for x in JW if x[0] in "va"}
                sw = {x for x in JW if x[0] == "s"}
                if I.cls == "mfma" and vw & R: need(2, "valu->mfma", P)
                if I.cls == "valu":
                    if J.base in TRANS and I.base not in TRANS and vw & R: need(1, "trans->valu", P)
                    if I.base.startswith("v_permlane") and vw & R: need(2, "valu->permlane", P)
                    if I.base in ("v_readfirstlane_b32", "v_readlane_b32") and vw & R: need(1, "valu->readlane", P)
                    if ("dpp" in I.op or "row_" in I.mods or "quad_perm" in I.mods) and vw & R: need(2, "valu->dpp", P)
                    if sw & R: need(2, "valu sgpr->valu", P)
                    if ("sdwa" in J.op or "op_sel" in J.mods) and (vw & (R | W)): need(1, "sdwa/opsel", P)
                if I.cls == "vmem" and sw & R: need(5, "valu sgpr->vmem", P)
                if I.cls in ("salu", "smem") and sw & R: need(1, "valu sgpr->salu (pad)", P)
            if J.cls == "mfma":
                p8 = J.passes == 8
                if I.cls in ("valu", "vmem", "ds") and JW & (R | W): need(12 if p8 else 8, "mfma D->valu/mem", P)
                if I.cls == "mfma":
                    if JW & set(I.srcab): need(12 if p8 else 8, "mfma D->AB", P)
                    if JW & set(I.srcc) and not (J.w == I.srcc and J.passes == I.passes): need(10 if p8 else 6, "mfma D->C overlap", P)
                    if JW & W and not (J.w == I.w): need(10 if p8 else 6, "mfma D->D overlap", P)
                if I.cls == "valu" and set(J.srcc) & W: need(7 if p8 else 3, "mfma C WAR", P)
            if J.cls == "salu" and ("m", 0) in JW and getattr(I, "ldsdma", False): need(1, "m0->ldsdma", P)
            if J.cls == "vmem" and hasattr(J, "store_data") and len(J.store_data) >= 3:
                if set(J.store_data) & W: need(2 if I.cls == "valu" else 1, "store data WAR", P)
        if I.cls == "wait":
            m = re.search(r"vmcnt\((\d+)\)", I.text)
            if m:
                k = int(m.group(1));
                while len(vm) > k: vm.pop(0)
            m = re.search(r"lgkmcnt\((\d+)\)", I.text)
            if m:
                k = int(m.group(1))
                if any(x[2] for x in lg) and k > 0:
                    probs.append(f"{name}:{n}: counted lgkmcnt with smem outstanding")
                while len(lg) > k: lg.pop(0)
        else:
            for q, qn in ((vm, "vm"), (lg, "lgkm")):
                for regs, t, _ in q:
                    if regs & (R | W):
                        probs.append(f"{name}:{n}: {qn} pending '{t}' used by '{I.text}'")
            if I.cls == "vmem":
                vm.append((set(I.w), I.text, False))
                if len(vm) > 63: probs.append(f"{name}:{n}: vmcnt overflow")
            if I.cls == "ds":
                lg.append((set(I.w), I.text, False))
            if I.cls == "smem":
                lg.append((set(I.w), I.text, True))
        hist.append((pos, I))
        if I.cls == "nop":
            pos += int(I.ops[0], 0) + 1
        else:
            pos += 1
    if verbose:
        for p in probs[:40]:
            print("HAZARD", p)
        print(f"check {name}: {len(ins)} instrs, {len(probs)} problems")
    return probs

def kd(name, vgpr, sgpr=102, accum=None):
    accum = accum or (vgpr + 3) // 4 * 4
    return f""".section .rodata,"a"
.p2align 6
.amdhsa_kernel {name}
  .amdhsa_next_free_vgpr {vgpr}
  .amdhsa_next_free_sgpr {sgpr}
  .amdhsa_accum_offset {accum}
  .amdhsa_group_segment_fixed_size 0
  .amdhsa_kernarg_size 80
  .amdhsa_user_sgpr_count 2
  .amdhsa_user_sgpr_kernarg_segment_ptr 1
  .amdhsa_system_sgpr_workgroup_id_x 1
.end_amdhsa_kernel
.text
"""
def khead(name):
    return f""".text
.globl {name}
.p2align 8
.type {name},@function
{name}:
"""
```

```python
from asmlib import *
from k2 import WS_Q, WS_KV, WS_O, WS_H, WS_W, WS_G, WS_SIZE

QSCALE = 0.25 * 1.4426950408889634
import struct
def f32(x): return "0x%08x" % struct.unpack("<I", struct.pack("<f", x))[0]

def interleave(a, main, fill, start=0, end=None):
    n = len(main)
    end = n if end is None else end
    ng = end - start
    k = 0
    for i, g in enumerate(main):
        for l in g: a(l)
        if start <= i < end:
            tgt = (len(fill) * (i - start + 1) + ng - 1) // ng
            while k < tgt:
                a(fill[k]); k += 1
    assert k == len(fill)

def gen_k1(name="ffa_kernel", stamps=False):
    a = Asm()
    sWave = 12; sRb = 13; sCg = 14; sT = 15; sT2 = 16; sT3 = 17; sTT = 18; sF0 = 19
    a(f"""
    s_cmp_ge_u32 s2, 256
    s_cbranch_scc1 L_{name}_end
    s_load_dwordx4 s[4:7], s[0:1], 0
    s_load_dwordx2 s[8:9], s[0:1], 16
    s_load_dwordx4 s[44:47], s[0:1], 32
    s_load_dwordx2 s[48:49], s[0:1], 48
    s_load_dwordx2 s[10:11], s[0:1], 72
    v_lshrrev_b32 v1, 6, v0
    v_and_b32 v2, 63, v0
    v_readfirstlane_b32 s{sWave}, v1
    s_and_b32 s{sT}, s2, 7
    s_lshr_b32 s{sT2}, s2, 3
    s_and_b32 s{sRb}, s{sT}, 1
    s_lshl_b32 s{sRb}, s{sRb}, 3
    s_and_b32 s{sT3}, s{sT2}, 7
    s_add_u32 s{sRb}, s{sRb}, s{sT3}
    s_lshr_b32 s{sCg}, s{sT}, 1
    s_lshl_b32 s{sCg}, s{sCg}, 2
    s_lshr_b32 s{sT3}, s{sT2}, 3
    s_add_u32 s{sCg}, s{sCg}, s{sT3}
    s_lshr_b32 s{sF0}, s{sCg}, 1
    s_mul_i32 s{sF0}, s{sF0}, 7
    s_and_b32 s{sT}, s{sCg}, 1
    s_lshl_b32 s{sT}, s{sT}, 2
    s_add_u32 s{sF0}, s{sF0}, s{sT}
    s_mov_b32 s22, {2048*1024}
    s_mov_b32 s23, 0x00020000
    s_mov_b32 s26, {512*3072}
    s_mov_b32 s27, 0x00020000
    s_mov_b32 s30, {512*3584}
    s_mov_b32 s31, 0x00020000
    s_mov_b32 s34, {WS_SIZE}
    s_mov_b32 s35, 0x00020000
    s_mov_b32 s39, 0x00020000
    s_mov_b32 s42, 1024
    s_mov_b32 s43, 0x00020000
    s_waitcnt lgkmcnt(0)
    s_mov_b32 s20, s4
    s_mov_b32 s21, s5
    s_mov_b32 s24, s6
    s_mov_b32 s25, s7
    s_mov_b32 s28, s44
    s_mov_b32 s29, s45
    s_mov_b32 s32, s10
    s_mov_b32 s33, s11
    s_mov_b32 s40, s48
    s_mov_b32 s41, s49
    s_cmp_ge_u32 s{sWave}, 4
    s_cbranch_scc1 L_{name}_loader
    """)
    SLOT = [0, 32768, 65536, 98304, 131072]
    jobslot = [4, 0, 1, 2, 3, 4, 0]
    vL = 2; vL16 = 3; vXA = 4
    vWA = 12
    vT = 15; vVO = 16
    vE = 18
    vPk = 34
    NST = 6
    vW = [44 + 4 * i for i in range(NST)]
    vAcc = [68, 84]
    vX = 128
    c = Asm()
    c(f"""
    v_lshlrev_b32 v{vL16}, 4, v{vL}
    s_lshl_b32 s{sTT}, s{sRb}, 2
    s_add_u32 s{sTT}, s{sTT}, s{sWave}
    v_and_b32 v{vT}, 31, v{vL}
    v_lshlrev_b32 v{vE}, 10, v{vT}
    s_lshl_b32 s{sT}, s{sWave}, 15
    v_add_u32 v{vE}, s{sT}, v{vE}
    v_lshrrev_b32 v{vE+1}, 5, v{vL}
    v_and_b32 v{vE+2}, 15, v{vL}
    """)
    for s in range(8):
        c(f"v_or_b32 v{vE+3}, {2*s}, v{vE+1}")
        c(f"v_xor_b32 v{vE+3}, v{vE+3}, v{vE+2}")
        c(f"v_lshl_add_u32 v{vXA+s}, v{vE+3}, 4, v{vE}")
    c(f"""
    v_lshrrev_b32 v{vE}, 5, v{vL}
    v_lshlrev_b32 v{vE}, 9, v{vE}
    v_bfe_u32 v{vE+1}, v{vL}, 2, 2
    v_lshl_add_u32 v{vE}, v{vE+1}, 6, v{vE}
    v_bfe_u32 v{vE+1}, v{vL}, 4, 1
    v_lshl_add_u32 v{vE}, v{vE+1}, 5, v{vE}
    v_and_b32 v{vE+1}, 3, v{vL}
    v_lshl_add_u32 v{vWA}, v{vE+1}, 3, v{vE}
    v_add_u32 v{vWA+1}, 0x10000, v{vWA}
    v_add_u32 v{vWA+2}, 0x20000, v{vWA}
    v_bfe_u32 v{vE}, v{vL}, 4, 1
    v_lshlrev_b32 v{vE}, 17, v{vE}
    v_lshrrev_b32 v{vE+1}, 5, v{vL}
    v_lshl_add_u32 v{vE}, v{vE+1}, 8, v{vE}
    v_and_b32 v{vE+1}, 15, v{vL}
    v_lshl_add_u32 v{vVO}, v{vE+1}, 4, v{vE}
    s_barrier
    """)
    for s in range(32):
        c(f"ds_read_b128 {vr(vX+4*s,4)}, v{vXA+(s&7)} offset:{(s>>3)*256}")
        if s % 8 == 7 and s < 31: c("s_waitcnt lgkmcnt(4)")
    def wread(job, s):
        base = SLOT[jobslot[job]] + s * 1024
        st = vW[(job * 32 + s) % NST]
        return [f"ds_read_b64_tr_b16 {vr(st,2)}, v{vWA + base//65536} offset:{base%65536}",
                f"ds_read_b64_tr_b16 {vr(st+2,2)}, v{vWA + base//65536} offset:{base%65536+256}"]
    PD = NST - 1
    for s in range(PD):
        for l in wread(0, s): c(l)
    c(f"s_waitcnt lgkmcnt({2*PD})")
    c("s_barrier")
    def epilogue(job):
        acc = vAcc[job % 2]
        f = []
        if job == 0:
            f.append(f"s_mov_b32 s{sT3}, {f32(QSCALE)}")
            for j in range(16): f.append(f"v_mul_f32 v{acc+j}, s{sT3}, v{acc+j}")
        if job >= 3:
            f.append(f"s_mov_b32 s{sT3}, {f32(-1.4426950408889634)}")
            for h in range(2):
                for j in range(8): f.append(f"v_mul_f32 v{vE+j}, s{sT3}, v{acc+8*h+j}")
                for j in range(8): f.append(f"v_exp_f32 v{vE+j}, v{vE+j}")
                for j in range(8): f.append(f"v_add_f32 v{vE+j}, 1.0, v{vE+j}")
                for j in range(8): f.append(f"v_rcp_f32 v{vE+j}, v{vE+j}")
                for j in range(8): f.append(f"v_mul_f32 v{acc+8*h+j}, v{acc+8*h+j}, v{vE+j}")
        for j in range(8): f.append(f"v_cvt_pk_bf16_f32 v{vPk+j}, v{acc+2*j}, v{acc+2*j+1}")
        if job == 0:
            f += [f"s_lshl_b32 s{sT}, s{sCg}, 17", f"s_lshl_b32 s{sT2}, s{sTT}, 10", f"s_add_u32 s{sT}, s{sT}, s{sT2}",
                  f"s_add_u32 s{sT2}, s{sT}, 65536",
                  f"buffer_store_dwordx4 {vr(vPk,4)}, v{vL16}, s[32:35], s{sT} offen",
                  f"buffer_store_dwordx4 {vr(vPk+4,4)}, v{vL16}, s[32:35], s{sT2} offen"]
        elif job == 1:
            f += [f"s_lshl_b32 s{sT}, s{sCg}, 18", f"s_lshl_b32 s{sT2}, s{sTT}, 10", f"s_add_u32 s{sT}, s{sT}, s{sT2}",
                  f"s_add_u32 s{sT}, s{sT}, {WS_KV}", f"s_add_u32 s{sT2}, s{sT}, 131072",
                  f"buffer_store_dwordx4 {vr(vPk,4)}, v{vL16}, s[32:35], s{sT} offen",
                  f"buffer_store_dwordx4 {vr(vPk+4,4)}, v{vL16}, s[32:35], s{sT2} offen"]
        elif job == 2:
            f += [f"s_lshl_b32 s{sT}, s{sCg}, 18", f"s_lshl_b32 s{sT2}, s{sTT}, 10", f"s_add_u32 s{sT}, s{sT}, s{sT2}",
                  f"s_add_u32 s{sT}, s{sT}, {WS_KV + 65536}",
                  f"buffer_store_dwordx4 {vr(vPk,4)}, v{vVO}, s[32:35], s{sT} offen",
                  f"buffer_store_dwordx4 {vr(vPk+4,4)}, v{vVO}, s[32:35], s{sT} offen offset:512"]
        else:
            f += [f"s_mul_i32 s{sT}, s{sTT}, {112*1024}", f"s_add_u32 s{sT2}, s{sF0}, {job-3}", f"s_lshl_b32 s{sT2}, s{sT2}, 11",
                  f"s_add_u32 s{sT}, s{sT}, s{sT2}", f"s_add_u32 s{sT}, s{sT}, {WS_H}",
                  f"buffer_store_dwordx4 {vr(vPk,4)}, v{vL16}, s[32:35], s{sT} offen",
                  f"buffer_store_dwordx4 {vr(vPk+4,4)}, v{vL16}, s[32:35], s{sT} offen offset:1024"]
        return f
    def job_main(job, last):
        acc = vAcc[job % 2]
        groups = []
        for s in range(32):
            g = []
            st = vW[(job * 32 + s) % NST]
            nxt = s + PD
            if s == 32 - PD and not last:
                pass
            rem = min(PD - 1, (31 - s) if last else PD - 1)
            g.append(f"s_waitcnt lgkmcnt({2*rem})")
            cc = "0" if s == 0 else vr(acc, 16)
            if job == 2:
                g.append(f"v_mfma_f32_32x32x16_bf16 {vr(acc,16)}, {vr(vX+4*s,4)}, {vr(st,4)}, {cc}")
            else:
                g.append(f"v_mfma_f32_32x32x16_bf16 {vr(acc,16)}, {vr(st,4)}, {vr(vX+4*s,4)}, {cc}")
            if nxt == 32 and not last:
                g.append("s_barrier")
            if nxt < 32:
                g += wread(job, nxt)
            elif not last:
                g += wread(job + 1, nxt - 32)
            groups.append(g)
        return groups
    for job in range(6):
        if job < 5:
            interleave(c, job_main(job, False), epilogue(job - 1) if job > 0 else [], start=2, end=30)
    c(f"s_bitcmp1_b32 s{sCg}, 0")
    c(f"s_cbranch_scc1 L_{name}_odd")
    ce = Asm()
    interleave(ce, job_main(5, False), epilogue(4), start=2, end=30)
    interleave(ce, job_main(6, True), epilogue(5), start=2, end=30)
    ce("s_nop 11")
    for l in epilogue(6): ce(l)
    ce("s_endpgm")
    co = Asm()
    co.label(f"L_{name}_odd")
    jm = job_main(5, True)
    jm[32 - PD].append("s_barrier")
    interleave(co, jm, epilogue(4), start=2, end=30)
    co(f"s_cmp_lg_u32 s{sCg}, 1")
    co(f"s_cbranch_scc1 L_{name}_nogate")
    cg = Asm()
    cg(f"v_lshrrev_b32 v{vT}, 5, v{vL}")
    cg(f"v_lshlrev_b32 v{vT}, 4, v{vT}")
    acc = vAcc[0]
    for s in range(PD):
        cg(f"buffer_load_dwordx4 {vr(vW[s%NST],4)}, v{vT}, s[40:43], 0 offen offset:{s*32}")
    for s in range(32):
        rem = min(PD - 1, 31 - s)
        cg(f"s_waitcnt vmcnt({rem})")
        cc = "0" if s == 0 else vr(acc, 16)
        cg(f"v_mfma_f32_32x32x16_bf16 {vr(acc,16)}, {vr(vW[s%NST],4)}, {vr(vX+4*s,4)}, {cc}")
        if s + PD < 32:
            cg(f"buffer_load_dwordx4 {vr(vW[(s+PD)%NST],4)}, v{vT}, s[40:43], 0 offen offset:{(s+PD)*32}")
    cg(f"""
    s_mov_b32 s{sT3}, {f32(-1.4426950408889634)}
    s_lshl_b32 s{sT}, s{sTT}, 7
    s_add_u32 s{sT}, s{sT}, {WS_G}
    v_lshlrev_b32 v{vT}, 2, v{vL}
    s_nop 8
    v_mul_f32 v{vE}, s{sT3}, v{acc}
    v_exp_f32 v{vE}, v{vE}
    s_nop 0
    v_add_f32 v{vE}, 1.0, v{vE}
    v_rcp_f32 v{vE}, v{vE}
    s_mov_b64 exec, 0xffffffff
    buffer_store_dword v{vE}, v{vT}, s[32:35], s{sT} offen
    s_mov_b64 exec, -1
    """)
    cn = Asm()
    cn.label(f"L_{name}_nogate")
    cn("s_nop 11")
    for l in epilogue(5): cn(l)
    cn("s_endpgm")
    l = Asm()
    l.label(f"L_{name}_loader")
    sJ = 50; sXB = 51; sM = 52; sSo = 53
    vSw = 8
    vWq = 24; vW1 = 25; vR = 26
    l(f"s_sub_u32 s{sJ}, s{sWave}, 4")
    for r in range(16):
        l(f"v_xor_b32 v{vSw+r}, {r}, v{vL}")
        l(f"v_lshlrev_b32 v{vSw+r}, 4, v{vSw+r}")
    l(f"""
    v_lshrrev_b32 v{vR}, 2, v{vL}
    v_and_b32 v{vR+1}, 3, v{vL}
    v_lshlrev_b32 v{vR+1}, 4, v{vR+1}
    v_mul_u32_u24 v{vWq}, 3072, v{vR}
    v_add_u32 v{vWq}, v{vWq}, v{vR+1}
    v_mul_u32_u24 v{vW1}, 3584, v{vR}
    v_add_u32 v{vW1}, v{vW1}, v{vR+1}
    """)
    def wdma(job):
        slot = SLOT[jobslot[job]]
        if job < 3:
            ldw, srd, vo = 3072, "s[24:27]", vWq
            l(f"s_lshl_b32 s{sSo}, s{sCg}, 6")
            if job: l(f"s_add_u32 s{sSo}, s{sSo}, {job*1024}")
        else:
            ldw, srd, vo = 3584, "s[28:31]", vW1
            l(f"s_add_u32 s{sSo}, s{sF0}, {job-3}")
            l(f"s_lshl_b32 s{sSo}, s{sSo}, 6")
        l(f"s_mul_i32 s{sT}, s{sJ}, {128*ldw}")
        l(f"s_add_u32 s{sSo}, s{sSo}, s{sT}")
        l(f"s_lshl_b32 s{sM}, s{sJ}, 13")
        l(f"s_add_u32 s{sM}, s{sM}, {slot}")
        for i in range(8):
            l(f"s_mov_b32 m0, s{sM}")
            if i < 7: l(f"s_add_u32 s{sM}, s{sM}, 1024")
            else: l("s_nop 0")
            l(f"buffer_load_dwordx4 v{vo}, {srd}, s{sSo} offen lds")
            if i < 7: l(f"s_add_u32 s{sSo}, s{sSo}, {16*ldw}")
    l(f"s_lshl_b32 s{sXB}, s{sRb}, 17")
    l(f"s_lshl_b32 s{sM}, s{sJ}, 15")
    l(f"s_add_u32 s{sXB}, s{sXB}, s{sM}")
    for r in range(32):
        if r % 4 == 0:
            l(f"s_mov_b32 m0, s{sM}")
            l(f"s_add_u32 s{sM}, s{sM}, 4096")
        l(f"buffer_load_dwordx4 v{vSw+(r&15)}, s[20:23], s{sXB} offen offset:{(r%4)*1024} lds")
        if r % 4 == 3: l(f"s_add_u32 s{sXB}, s{sXB}, 4096")
    wdma(0)
    l("s_waitcnt vmcnt(0)")
    l("s_barrier")
    l("s_barrier")
    for job in (1, 2, 3, 4): wdma(job)
    l("s_waitcnt vmcnt(24)")
    l("s_barrier")
    l("s_waitcnt vmcnt(16)")
    l("s_barrier")
    wdma(5)
    l("s_waitcnt vmcnt(16)")
    l("s_barrier")
    l(f"s_bitcmp1_b32 s{sCg}, 0")
    l(f"s_cbranch_scc1 L_{name}_lodd")
    wdma(6)
    l("""
    s_waitcnt vmcnt(16)
    s_barrier
    s_waitcnt vmcnt(8)
    s_barrier
    s_waitcnt vmcnt(0)
    s_barrier
    s_endpgm
    """)
    lo = Asm()
    lo.label(f"L_{name}_lodd")
    sBand = 54; sB2 = 55
    vRo = 28; vRa = 29; vD = 32
    lo(f"""
    s_lshl_b32 s{sBand}, s{sRb}, 3
    s_lshr_b32 s{sT}, s{sCg}, 1
    s_add_u32 s{sBand}, s{sBand}, s{sT}
    v_lshrrev_b32 v{vR}, 4, v{vL}
    v_lshlrev_b32 v{vR}, 10, v{vR}
    v_and_b32 v{vR+1}, 15, v{vL}
    v_lshl_add_u32 v{vRo}, v{vR+1}, 4, v{vR}
    v_lshrrev_b32 v{vR}, 5, v{vL}
    v_lshlrev_b32 v{vR}, 10, v{vR}
    v_bfe_u32 v{vR+1}, v{vL}, 2, 2
    v_lshl_add_u32 v{vR}, v{vR+1}, 8, v{vR}
    v_bfe_u32 v{vR+1}, v{vL}, 4, 1
    v_lshl_add_u32 v{vR}, v{vR+1}, 5, v{vR}
    v_and_b32 v{vR+1}, 3, v{vL}
    v_lshl_add_u32 v{vRa}, v{vR+1}, 3, v{vR}
    s_lshl_b32 s{sT}, s{sJ}, 12
    v_add_u32 v{vRa}, s{sT}, v{vRa}
    v_lshlrev_b32 v{vR}, 4, v{vL}
    s_mov_b32 s{sB2}, 0
    """)
    lo(f"""
    s_cmp_lt_u32 s{sBand}, 32
    s_cselect_b32 s36, s8, s46
    s_cselect_b32 s37, s9, s47
    s_mov_b32 s38, {1792*1024}
    s_cselect_b32 s38, {512*1024}, s38
    s_cselect_b32 s{sT}, 0, 32
    s_sub_u32 s{sT}, s{sBand}, s{sT}
    s_lshl_b32 s{sSo}, s{sT}, 14
    s_lshl_b32 s{sT}, s{sJ}, 8
    s_add_u32 s{sSo}, s{sSo}, s{sT}
    s_lshl_b32 s{sM}, s{sJ}, 12
    """)
    for i in range(4):
        lo(f"s_mov_b32 m0, s{sM}")
        lo(f"s_add_u32 s{sM}, s{sM}, 1024")
        lo(f"buffer_load_dwordx4 v{vRo}, s[36:39], s{sSo} offen lds")
        lo(f"s_add_u32 s{sSo}, s{sSo}, 4096")
    lo(f"""
    s_mov_b32 s56, s46
    s_mov_b32 s57, s47
    s_mov_b32 s58, {1792*1024}
    s_mov_b32 s59, 0x00020000
    s_add_u32 s{sT}, s{sBand}, 96
    s_lshl_b32 s{sSo}, s{sT}, 14
    s_lshl_b32 s{sT}, s{sJ}, 8
    s_add_u32 s{sSo}, s{sSo}, s{sT}
    s_lshl_b32 s{sM}, s{sJ}, 12
    s_add_u32 s{sM}, s{sM}, 16384
    """)
    for i in range(4):
        lo(f"s_mov_b32 m0, s{sM}")
        lo(f"s_add_u32 s{sM}, s{sM}, 1024")
        lo(f"buffer_load_dwordx4 v{vRo}, s[56:59], s{sSo} offen lds")
        lo(f"s_add_u32 s{sSo}, s{sSo}, 4096")
    lo("s_waitcnt vmcnt(16)")
    lo("s_barrier")
    lo("s_waitcnt vmcnt(0)")
    lo("s_barrier")
    for b in range(2):
        for n in range(4):
            lo(f"ds_read_b64_tr_b16 {vr(vD+16*b+4*n,2)}, v{vRa} offset:{b*16384+n*64}")
            lo(f"ds_read_b64_tr_b16 {vr(vD+16*b+4*n+2,2)}, v{vRa} offset:{b*16384+n*64+2048}")
    lo(f"""
    s_mul_i32 s{sT}, s{sJ}, {4*144*1024}
    s_lshl_b32 s{sT2}, s{sBand}, 10
    s_add_u32 s{sT}, s{sT}, s{sT2}
    s_add_u32 s{sT}, s{sT}, {WS_W}
    s_add_u32 s{sT2}, s{sT}, {128*1024}
    s_waitcnt lgkmcnt(0)
    """)
    for n in range(4):
        lo(f"buffer_store_dwordx4 {vr(vD+4*n,4)}, v{vR}, s[32:35], s{sT} offen")
        if n < 3: lo(f"s_add_u32 s{sT}, s{sT}, {144*1024}")
    lo(f"s_cmp_ge_u32 s{sBand}, 16")
    lo(f"s_cbranch_scc1 L_{name}_banddone")
    for n in range(4):
        lo(f"buffer_store_dwordx4 {vr(vD+16+4*n,4)}, v{vR}, s[32:35], s{sT2} offen")
        if n < 3: lo(f"s_add_u32 s{sT2}, s{sT2}, {144*1024}")
    lo.label(f"L_{name}_banddone")
    lo("s_barrier")
    lo.label(f"L_{name}_end")
    lo("s_endpgm")
    check(a.lines + c.lines + ce.lines, name + "_even")
    check(a.lines + c.lines + co.lines + cg.lines + cn.lines, name + "_odd_gate")
    check(a.lines + c.lines + co.lines + cn.lines, name + "_odd")
    check(a.lines + l.lines, name + "_loader")
    check(a.lines + l.lines[:-7] + lo.lines, name + "_loader_odd")
    return khead(name) + a.text() + c.text() + ce.text() + co.text() + cg.text() + cn.text() + l.text() + lo.text() + kd(name, 256, 64)

if __name__ == "__main__":
    hdr = "; @launch kernel=ffa_kernel grid=(256,1,1) block=(512,1,1) lds=163840\n" + '.amdgcn_target "amdgcn-amd-amdhsa--gfx950"\n'
    open("k1.s", "w").write(hdr + gen_k1())
```

```python
from asmlib import *

WS_Q = 0
WS_KV = 2 << 20
WS_O = 6 << 20
WS_H = 8 << 20
WS_W = 16 << 20
WS_G = 20 << 20
WS_SIZE = 32 << 20

def gen_k2(name="att_kernel", stamps=False, exp=""):
    a = Asm()
    nst = [0]
    def stamp():
        if stamps:
            a(f"s_memtime s[{40+2*nst[0]}:{41+2*nst[0]}]")
            a(f"s_memrealtime s[{50+2*nst[0]}:{51+2*nst[0]}]")
            a("s_waitcnt lgkmcnt(0)")
            nst[0] += 1
    vL16 = 1; vKA = 2; vVA = 3; vT = 4; vT2 = 5; vT3 = 6; vM = 7
    vQ = 8
    vK = [12, 16]
    vV = [[20, 24], [28, 32]]
    vP = 36
    vNM = 44
    vS = [60, 76]
    vO = 92
    NV = 108
    sWave = 12; sHead = 13; sQb = 14; sKV = 15; sT = 16; sT2 = 17; sVM = 18
    a(f"""
    s_cmp_ge_u32 s2, 256
    s_cbranch_scc1 L_{name}_end
    """)
    stamp()
    a(f"""
    s_load_dwordx2 s[4:5], s[0:1], 72
    v_lshrrev_b32 v{vT}, 6, v0
    v_and_b32 v{vL16}, 63, v0
    v_readfirstlane_b32 s{sWave}, v{vT}
    v_lshlrev_b32 v{vL16}, 4, v{vL16}
    s_and_b32 s{sHead}, s2, 7
    s_lshl_b32 s{sHead}, s{sHead}, 2
    s_lshr_b32 s{sT}, s2, 3
    s_and_b32 s{sT2}, s{sT}, 3
    s_add_u32 s{sHead}, s{sHead}, s{sT2}
    s_lshr_b32 s{sQb}, s{sT}, 2
    s_lshl_b32 s{sQb}, s{sQb}, 3
    s_add_u32 s{sQb}, s{sQb}, s{sWave}
    s_lshl_b32 s{sKV}, s{sHead}, 17
    s_add_u32 s{sKV}, s{sKV}, {WS_KV}
    s_lshl_b32 s{sT}, s{sHead}, 16
    s_lshl_b32 s{sT2}, s{sQb}, 10
    s_add_u32 s{sT}, s{sT}, s{sT2}
    s_mov_b32 s10, {WS_SIZE}
    s_mov_b32 s11, 0x00020000
    s_waitcnt lgkmcnt(0)
    s_mov_b32 s8, s4
    s_mov_b32 s9, s5
    buffer_load_dwordx4 {vr(vQ,4)}, v{vL16}, s[8:11], s{sT} offen
    """)
    a(f"""
    s_lshl_b32 s{sT}, s{sWave}, 10
    s_mov_b32 m0, s{sT}
    s_add_u32 s{sT2}, s{sKV}, s{sT}
    buffer_load_dwordx4 v{vL16}, s[8:11], s{sT2} offen lds
    s_add_u32 s{sT}, s{sT}, 65536
    s_mov_b32 m0, s{sT}
    s_add_u32 s{sT2}, s{sKV}, s{sT}
    buffer_load_dwordx4 v{vL16}, s[8:11], s{sT2} offen lds
    """)
    for (base, n) in ((8192, 3), (32768, 4)):
        a(f"s_mul_i32 s{sT}, s{sWave}, {n*1024}")
        a(f"s_add_u32 s{sT}, s{sT}, {base}")
        for kv in range(2):
            if kv: a(f"s_add_u32 s{sT}, s{sT}, 65536")
            a(f"s_mov_b32 m0, s{sT}")
            a(f"s_add_u32 s{sT2}, s{sKV}, s{sT}")
            for j in range(n):
                a(f"buffer_load_dwordx4 v{vL16}, s[8:11], s{sT2} offen offset:{j*1024} lds")
    a(f"""
    v_mov_b32 v{vKA}, v{vL16}
    v_and_b32 v{vT}, 15, v0
    v_lshlrev_b32 v{vT}, 4, v{vT}
    v_and_b32 v{vT2}, 32, v0
    v_lshlrev_b32 v{vT2}, 3, v{vT2}
    v_add_u32 v{vVA}, v{vT}, v{vT2}
    v_add_u32 v{vVA}, 0x10000, v{vVA}
    s_mov_b32 s{sVM}, 0x0000ffff
    s_mov_b32 s{sVM+1}, 0x0000ffff
    s_mov_b32 s{sT}, 0x3f803f80
    """)
    if "ones" not in exp:
        a(f"v_and_b32 v{vT}, 27, v0")
        a(f"v_cmp_eq_u32 vcc, 16, v{vT}")
        a(f"v_mov_b32 v{vT2}, s{sT}")
        a(f"s_nop 0")
        a(f"v_cndmask_b32 v{vT}, 0, v{vT2}, vcc")
    else:
        a(f"v_mov_b32 v{vT}, s{sT}")
    for b in range(2):
        for g in range(2):
            for j in range(4):
                a(f"v_mov_b32 v{vV[b][g]+j}, v{vT}")
    def readK(i):
        if "nolds" in exp and i > 1: return
        a(f"ds_read_b128 {vr(vK[i%2],4)}, v{vKA} offset:{i*1024}")
    def readV(i):
        if "nolds" in exp and i > 1: return
        if "noexec" not in exp: a(f"s_mov_b64 exec, s[{sVM}:{sVM+1}]")
        a(f"ds_read_b128 {vr(vV[i%2][0],4)}, v{vVA} offset:{i*1024}")
        a(f"ds_read_b128 {vr(vV[i%2][1],4)}, v{vVA} offset:{i*1024+512}")
        if "noexec" not in exp: a(f"s_mov_b64 exec, -1")
    def mS(i, c):
        a(f"v_mfma_f32_32x32x16_bf16 {vr(vS[i%2],16)}, {vr(vK[i%2],4)}, {vr(vQ,4)}, {c}")
    def mPV(i, g, first=False):
        c = "0" if first else vr(vO, 16)
        if "nopv" in exp and 0 < i < 63: return
        a(f"v_mfma_f32_32x32x16_bf16 {vr(vO,16)}, {vr(vV[i%2][g],4)}, {vr(vP+4*g,4)}, {c}")
    a("s_waitcnt vmcnt(14)")
    a("s_barrier")
    stamp()
    readK(0); readK(1); readV(0)
    a("s_waitcnt lgkmcnt(3)")
    mS(0, "0")
    a("s_nop 11")
    S0 = vS[0]
    a(f"v_max3_f32 v{vM}, v{S0}, v{S0+1}, v{S0+2}")
    a(f"v_max3_f32 v{vT}, v{S0+3}, v{S0+4}, v{S0+5}")
    a(f"v_max3_f32 v{vM}, v{vM}, v{S0+6}, v{S0+7}")
    a(f"v_max3_f32 v{vT}, v{vT}, v{S0+8}, v{S0+9}")
    a(f"v_max3_f32 v{vM}, v{vM}, v{S0+10}, v{S0+11}")
    a(f"v_max3_f32 v{vT}, v{vT}, v{S0+12}, v{S0+13}")
    a(f"v_max3_f32 v{vM}, v{vM}, v{S0+14}, v{S0+15}")
    a(f"v_max_f32 v{vM}, v{vM}, v{vT}")
    a(f"v_mov_b32 v{vT}, v{vM}")
    a("s_nop 1")
    a(f"v_permlane32_swap_b32 v{vM}, v{vT}")
    a("s_nop 1")
    a(f"v_max_f32 v{vM}, v{vM}, v{vT}")
    for j in range(16):
        a(f"v_sub_f32 v{vNM+j}, 0, v{vM}")
    a("s_nop 1")
    mS(0, vr(vNM, 16))
    NT = 64
    for i in range(NT):
        S = vS[i % 2]
        E = lambda j: a(f"v_exp_f32 v{S+j}, v{S+j}") if "noexp" not in exp else a(f"v_mov_b32 v{S+j}, v{S+j}")
        C = lambda j: a(f"v_cvt_pk_bf16_f32 v{vP+j}, v{S+2*j}, v{S+2*j+1}")
        if i == 6:
            a("s_waitcnt vmcnt(8)")
            if "nobar" not in exp: a("s_barrier")
        if i == 30:
            a("s_waitcnt vmcnt(0)")
            if "nobar" not in exp: a("s_barrier")
        if "prio" in exp:
            pr = {0: 3, 30: 2, 50: 1, 60: 0}
            if i in pr: a(f"s_setprio {pr[i]}")
        if "prib" in exp:
            pr = {0: 3, 3: 2, 5: 1, 6: 3, 20: 2, 27: 1, 29: 0, 30: 3, 48: 2, 58: 1, 62: 0}
            if i in pr: a(f"s_setprio {pr[i]}")
        if "ord2" in exp and i > 0:
            Sp = vS[(i - 1) % 2]
            a(f"v_cvt_pk_bf16_f32 v{vP+7}, v{Sp+14}, v{Sp+15}")
        if i + 1 < NT:
            if i > 0:
                a("s_waitcnt lgkmcnt(2)")
            else:
                a("s_waitcnt lgkmcnt(2)")
            mS(i + 1, vr(vNM, 16))
        if i + 2 < NT:
            readK(i + 2)
        if i == 0:
            a("s_nop 9")
        if "ord2" in exp:
            Sp = vS[(i + 1) % 2]
            E(0); E(1); E(2); E(3); C(0); E(4)
        else:
            E(0); E(1); E(2); C(0); E(3); E(4); C(1)
        if i > 0:
            if i == NT - 1: a("s_waitcnt lgkmcnt(2)")
            mPV(i - 1, 1)
        if i + 1 < NT:
            readV(i + 1)
        if "ord2" in exp:
            E(5); C(1); E(6); E(7); C(2); E(8); E(9); C(3); E(10); a("s_nop 0")
        else:
            E(5); E(6); C(2); E(7); E(8); C(3); E(9); E(10)
        n_after = 1 + (1 if i + 2 < NT else 0) + (2 if i + 1 < NT else 0)
        a(f"s_waitcnt lgkmcnt({n_after})")
        mPV(i, 0, first=(i == 0))
        if "ord2" in exp:
            E(11); E(12); C(4); E(13); C(5); E(14); E(15); C(6)
            if i == NT - 1: C(7)
        else:
            E(11); C(4); E(12); C(5); E(13); E(14); C(6); E(15)
            a("s_nop 0")
            C(7)
    a("s_waitcnt lgkmcnt(0)")
    a("s_nop 0")
    mPV(NT - 1, 1)
    a("s_nop 11")
    stamp()
    a(f"""
    v_add_f32 v{vT}, abs(v{vO}), abs(v{vO+1})
    v_add_f32 v{vT2}, abs(v{vO+2}), abs(v{vO+3})
    v_add_f32 v{vT}, v{vT}, abs(v{vO+4})
    v_add_f32 v{vT2}, v{vT2}, abs(v{vO+5})
    v_add_f32 v{vT}, v{vT}, abs(v{vO+6})
    v_add_f32 v{vT2}, v{vT2}, abs(v{vO+7})
    v_add_f32 v{vT}, v{vT}, v{vT2}
    s_mov_b32 s{sT}, 0x7f000000
    s_mov_b32 s{sT2}, 0x53800000
    v_cmp_nle_f32 vcc, v{vT}, s{sT}
    v_cmp_nle_f32 s[20:21], v{vO+8}, s{sT2}
    s_nop 1
    s_or_b64 vcc, vcc, s[20:21]
    s_cbranch_vccnz L_{name}_slow
    """)
    a.label(f"L_{name}_fin")
    a(f"""
    v_rcp_f32 v{vT}, v{vO+8}
    s_lshl_b32 s{sT}, s{sQb}, 15
    s_lshl_b32 s{sT2}, s{sHead}, 10
    s_add_u32 s{sT}, s{sT}, s{sT2}
    s_add_u32 s{sT}, s{sT}, {WS_O}
    """)
    for j in range(8):
        a(f"v_mul_f32 v{vO+j}, v{vO+j}, v{vT}")
    for j in range(4):
        a(f"v_cvt_pk_bf16_f32 v{vP+j}, v{vO+2*j}, v{vO+2*j+1}")
    a(f"buffer_store_dwordx4 {vr(vP,4)}, v{vL16}, s[8:11], s{sT} offen")
    if stamps:
        a("s_waitcnt vmcnt(0)")
        stamp()
        a(f"s_lshl_b32 s{sT}, s2, 3")
        a(f"s_add_u32 s{sT}, s{sT}, s{sWave}")
        a(f"s_lshl_b32 s{sT}, s{sT}, 5")
        a(f"s_add_u32 s{sT}, s{sT}, {24<<20}")
        for j in range(4):
            a(f"v_mov_b32 v{vP+j}, s{40+2*j}")
        a(f"v_mov_b32 v{vT}, 0")
        a(f"s_mov_b64 exec, 1")
        a(f"buffer_store_dwordx4 {vr(vP,4)}, v{vT}, s[8:11], s{sT} offen")
        for j in range(4):
            a(f"v_mov_b32 v{vP+4+j}, s{50+2*j}")
        a(f"buffer_store_dwordx4 {vr(vP+4,4)}, v{vT}, s[8:11], s{sT} offen offset:16")
    a.label(f"L_{name}_end")
    a("s_endpgm")
    fast = list(a.lines)
    b = Asm()
    b.label(f"L_{name}_slow")
    S = vS[0]
    b(f"s_mov_b32 s{sT}, 0xff800000")
    b(f"v_mov_b32 v{vM}, s{sT}")
    for j in range(16):
        b(f"v_mov_b32 v{vO+j}, 0")
    b(f"s_mov_b32 s22, 0")
    b.label(f"L_{name}_slowloop")
    b(f"""
    ds_read_b128 {vr(vK[0],4)}, v{vKA}
    s_mov_b64 exec, s[{sVM}:{sVM+1}]
    ds_read_b128 {vr(vV[0][0],4)}, v{vVA}
    ds_read_b128 {vr(vV[0][1],4)}, v{vVA} offset:512
    s_mov_b64 exec, -1
    s_waitcnt lgkmcnt(0)
    v_mfma_f32_32x32x16_bf16 {vr(S,16)}, {vr(vK[0],4)}, {vr(vQ,4)}, 0
    v_add_u32 v{vKA}, 1024, v{vKA}
    v_add_u32 v{vVA}, 1024, v{vVA}
    s_nop 9
    v_max3_f32 v{vT}, v{S}, v{S+1}, v{S+2}
    v_max3_f32 v{vT}, v{vT}, v{S+3}, v{S+4}
    v_max3_f32 v{vT}, v{vT}, v{S+5}, v{S+6}
    v_max3_f32 v{vT}, v{vT}, v{S+7}, v{S+8}
    v_max3_f32 v{vT}, v{vT}, v{S+9}, v{S+10}
    v_max3_f32 v{vT}, v{vT}, v{S+11}, v{S+12}
    v_max3_f32 v{vT}, v{vT}, v{S+13}, v{S+14}
    v_max_f32 v{vT}, v{vT}, v{S+15}
    v_mov_b32 v{vT2}, v{vT}
    s_nop 1
    v_permlane32_swap_b32 v{vT}, v{vT2}
    s_nop 1
    v_max3_f32 v{vT}, v{vT}, v{vT2}, v{vM}
    v_sub_f32 v{vT2}, v{vM}, v{vT}
    v_exp_f32 v{vT2}, v{vT2}
    v_mov_b32 v{vM}, v{vT}
    """)
    for j in range(16):
        b(f"v_mul_f32 v{vO+j}, v{vO+j}, v{vT2}")
    for j in range(16):
        b(f"v_sub_f32 v{S+j}, v{S+j}, v{vM}")
    for j in range(16):
        b(f"v_exp_f32 v{S+j}, v{S+j}")
    b("s_nop 0")
    for j in range(8):
        b(f"v_cvt_pk_bf16_f32 v{vP+j}, v{S+2*j}, v{S+2*j+1}")
    b(f"""
    s_nop 1
    v_mfma_f32_32x32x16_bf16 {vr(vO,16)}, {vr(vV[0][0],4)}, {vr(vP,4)}, {vr(vO,16)}
    v_mfma_f32_32x32x16_bf16 {vr(vO,16)}, {vr(vV[0][1],4)}, {vr(vP+4,4)}, {vr(vO,16)}
    s_add_u32 s22, s22, 1
    s_cmp_lt_u32 s22, 64
    s_nop 11
    s_cbranch_scc1 L_{name}_slowloop
    s_branch L_{name}_fin
    """)
    check(fast, name, verbose=('nolds' not in exp))
    check(b.lines + b.lines, name + "_slow")
    txt = khead(name) + a.text() + b.text() + kd(name, NV, 64)
    return txt

if __name__ == "__main__":
    hdr = "; @launch kernel=att_kernel grid=(256,1,1) block=(512,1,1) lds=131072\n" + '.amdgcn_target "amdgcn-amd-amdhsa--gfx950"\n'
    open("k2.s", "w").write(hdr + gen_k2())
    open("k2s.s", "w").write(hdr + gen_k2(stamps=True))
    for e in ("nobar", "nobar_prio", "prib", "nobar_prio_nolds"):
        open(f"k2s_{e}.s", "w").write(hdr + gen_k2(stamps=True, exp=e))
```

```python
from asmlib import *
from k2 import WS_Q, WS_KV, WS_O, WS_H, WS_W, WS_G, WS_SIZE

def gen_k3(name="fin_kernel"):
    a = Asm()
    sWave = 12; sTb = 13; sNb = 14; sT = 15; sT2 = 16; sK0 = 17; sNk = 18; sA0 = 19; sA1 = 20; sB0 = 21; sB1 = 22; sT3 = 23
    vL = 1; vL16 = 2; vT = 3; vG = 4; vT2 = 6; vRA = 7
    NST = 6
    vF = [8 + 16 * i for i in range(NST)]
    vAcc = 104
    NK = 19
    a(f"""
    s_cmp_ge_u32 s2, 256
    s_cbranch_scc1 L_{name}_end
    s_load_dwordx2 s[4:5], s[0:1], 56
    s_load_dwordx2 s[6:7], s[0:1], 72
    v_lshrrev_b32 v{vT}, 6, v0
    v_and_b32 v{vL}, 63, v0
    v_readfirstlane_b32 s{sWave}, v{vT}
    v_lshlrev_b32 v{vL16}, 4, v{vL}
    s_and_b32 s{sT}, s2, 7
    s_lshl_b32 s{sTb}, s{sT}, 2
    s_lshr_b32 s{sT}, s2, 3
    s_and_b32 s{sT2}, s{sT}, 3
    s_add_u32 s{sTb}, s{sTb}, s{sT2}
    s_lshr_b32 s{sNb}, s{sT}, 2
    """)
    a(f"""
    s_sub_u32 s{sT}, s{sWave}, 2
    s_mul_i32 s{sK0}, s{sT}, 19
    s_cmp_eq_u32 s{sWave}, 7
    s_cselect_b32 s{sT2}, 1, 0
    s_sub_u32 s{sK0}, s{sK0}, s{sT2}
    s_cmp_ge_u32 s{sWave}, 6
    s_cselect_b32 s{sNk}, 18, 19
    s_lshl_b32 s{sT2}, s{sWave}, 4
    s_cmp_lt_u32 s{sWave}, 2
    s_cselect_b32 s{sK0}, s{sT2}, s{sK0}
    s_cselect_b32 s{sNk}, 16, s{sNk}
    s_cselect_b32 s{sT3}, 0, 32
    s_mov_b32 s{sT}, {WS_H}
    s_cselect_b32 s{sB0}, {WS_O}, s{sT}
    s_mov_b32 s{sT}, {112*1024}
    s_cselect_b32 s{sT}, {32*1024}, s{sT}
    s_mul_i32 s{sT2}, s{sTb}, s{sT}
    s_lshl_b32 s{sT2}, s{sT2}, 1
    s_add_u32 s{sB0}, s{sB0}, s{sT2}
    s_lshl_b32 s{sT2}, s{sK0}, 10
    s_add_u32 s{sB0}, s{sB0}, s{sT2}
    s_add_u32 s{sB1}, s{sB0}, s{sT}
    s_add_u32 s{sT3}, s{sT3}, s{sK0}
    s_lshl_b32 s{sT3}, s{sT3}, 10
    s_mul_i32 s{sA0}, s{sNb}, {2*144*1024}
    s_add_u32 s{sA0}, s{sA0}, s{sT3}
    s_add_u32 s{sA0}, s{sA0}, {WS_W}
    s_add_u32 s{sA1}, s{sA0}, {144*1024}
    s_lshl_b32 s{sNk}, s{sNk}, 10
    s_waitcnt lgkmcnt(0)
    """)
    for (b, off) in ((24, sA0), (44, sA1), (28, sB0), (32, sB1)):
        a(f"s_add_u32 s{b}, s6, s{off}")
        a(f"s_addc_u32 s{b+1}, s7, 0")
        a(f"s_mov_b32 s{b+2}, s{sNk}")
        a(f"s_mov_b32 s{b+3}, 0x00020000")
    a(f"""
    s_mov_b32 s36, s4
    s_mov_b32 s37, s5
    s_mov_b32 s38, {2048*1024}
    s_mov_b32 s39, 0x00020000
    s_mov_b32 s40, s6
    s_mov_b32 s41, s7
    s_mov_b32 s42, {WS_SIZE}
    s_mov_b32 s43, 0x00020000
    v_and_b32 v{vT}, 31, v{vL}
    v_lshlrev_b32 v{vT}, 2, v{vT}
    s_lshl_b32 s{sT}, s{sTb}, 8
    s_add_u32 s{sT}, s{sT}, {WS_G}
    buffer_load_dword v{vG}, v{vT}, s[40:43], s{sT} offen
    buffer_load_dword v{vG+1}, v{vT}, s[40:43], s{sT} offen offset:128
    """)
    soff = [48, 49, 50, 51, 52]
    for i, s in enumerate(soff): a(f"s_mov_b32 s{s}, {4096*i}")
    def loads(k):
        f = vF[k % NST]
        for j, srd in enumerate((24, 28, 44, 32)):
            r = f + (0, 8, 4, 12)[j]
            a(f"buffer_load_dwordx4 {vr(r,4)}, v{vL16}, s[{srd}:{srd+3}], s{soff[k//4]} offen offset:{(k%4)*1024}")
    for k in range(NST): loads(k)
    for k in range(NK):
        f = vF[k % NST]
        rem = min(NST - 1, NK - 1 - k)
        a(f"s_waitcnt vmcnt({4*rem+2})")
        for idx, (i, j) in enumerate(((0, 0), (1, 0), (0, 1), (1, 1))):
            acc = vAcc + 16 * (i * 2 + j)
            cc = "0" if k == 0 else vr(acc, 16)
            if idx == 1: a(f"s_waitcnt vmcnt({4*rem+1})")
            if idx == 2: a(f"s_waitcnt vmcnt({4*rem})")
            a(f"v_mfma_f32_32x32x16_bf16 {vr(acc,16)}, {vr(f+4*i,4)}, {vr(f+8+4*j,4)}, {cc}")
        if k + NST < NK: loads(k + NST)
    a(f"""
    s_cmp_lt_u32 s{sWave}, 2
    s_cbranch_scc1 L_{name}_g
    v_sub_f32 v{vG}, 1.0, v{vG}
    v_sub_f32 v{vG+1}, 1.0, v{vG+1}
    """)
    a.label(f"L_{name}_g")
    a(f"s_lshl_b32 s{sT}, s{sWave}, 14")
    a(f"v_add_u32 v{vT}, s{sT}, v{vL16}")
    a("s_nop 6")
    for t in range(4):
        for r in range(16):
            a(f"v_mul_f32 v{vAcc+16*t+r}, v{vAcc+16*t+r}, v{vG+(t&1)}")
        for q in range(4):
            a(f"ds_write_b128 v{vT}, {vr(vAcc+16*t+4*q,4)} offset:{(t*4+q)*1024}")
    a("s_waitcnt lgkmcnt(0)")
    a("s_barrier")
    a(f"s_lshl_b32 s{sT}, s{sWave}, 11")
    a(f"v_add_u32 v{vT}, s{sT}, v{vL16}")
    a(f"v_add_u32 v{vT2}, 0x10000, v{vT}")
    for p in range(8):
        for u in range(2):
            base = vT if p < 4 else vT2
            a(f"ds_read_b128 {vr(8+32*u+4*p,4)}, v{base} offset:{(p%4)*16384+u*1024}")
    a("s_waitcnt lgkmcnt(0)")
    for u in range(2):
        b = 8 + 32 * u
        for step in (1, 2, 4):
            for p in range(0, 8, 2 * step):
                for r in range(4):
                    a(f"v_add_f32 v{b+4*p+r}, v{b+4*p+r}, v{b+4*(p+step)+r}")
    vO = 80
    a(f"""
    v_cvt_pk_bf16_f32 v{vO}, v8, v9
    v_cvt_pk_bf16_f32 v{vO+1}, v10, v11
    v_cvt_pk_bf16_f32 v{vO+2}, v40, v41
    v_cvt_pk_bf16_f32 v{vO+3}, v42, v43
    v_and_b32 v{vT}, 31, v{vL}
    v_lshlrev_b32 v{vT}, 10, v{vT}
    v_permlane32_swap_b32 v{vO}, v{vO+2}
    v_permlane32_swap_b32 v{vO+1}, v{vO+3}
    v_lshrrev_b32 v{vT2}, 5, v{vL}
    v_lshl_add_u32 v{vT}, v{vT2}, 4, v{vT}
    """)
    a(f"""
    s_lshl_b32 s{sT}, s{sTb}, 16
    s_bfe_u32 s{sT2}, s{sWave}, 0x10001
    s_lshl_b32 s{sT2}, s{sT2}, 15
    s_add_u32 s{sT}, s{sT}, s{sT2}
    s_lshl_b32 s{sT2}, s{sNb}, 7
    s_add_u32 s{sT}, s{sT}, s{sT2}
    s_lshr_b32 s{sT2}, s{sWave}, 2
    s_lshl_b32 s{sT2}, s{sT2}, 6
    s_add_u32 s{sT}, s{sT}, s{sT2}
    s_and_b32 s{sT2}, s{sWave}, 1
    s_lshl_b32 s{sT2}, s{sT2}, 5
    s_add_u32 s{sT}, s{sT}, s{sT2}
    buffer_store_dwordx4 {vr(vO,4)}, v{vT}, s[36:39], s{sT} offen
    """)
    a.label(f"L_{name}_end")
    a("s_endpgm")
    check(a.lines, name)
    return khead(name) + a.text() + kd(name, 168, 64)
```

```python
import sys
from k1 import gen_k1
from k2 import gen_k2
from k3 import gen_k3
NAME = "gated_mix__softmax_full_mha__dense_activation_silu__prompt"
ref = open(f"cdna_kernels/{NAME}.s.ref").read().split("\n")
hdr = [l for l in ref if l.startswith(";") and "@launch" not in l and "Override launch" not in l and "grid=ceil" not in l]
out = "\n".join(hdr) + "\n"
out += "; @launch kernel=ffa_kernel grid=(256,1,1) block=(512,1,1) lds=163840\n"
out += "; @launch kernel=att_kernel grid=(256,1,1) block=(512,1,1) lds=131072\n"
out += "; @launch kernel=fin_kernel grid=(256,1,1) block=(512,1,1) lds=131072\n"
out += '.amdgcn_target "amdgcn-amd-amdhsa--gfx950"\n'
out += gen_k1() + gen_k2(exp="prib") + gen_k3()
dst = sys.argv[1] if len(sys.argv) > 1 else f"cdna_kernels/{NAME}.s"
open(dst, "w").write(out)
print("wrote", dst, len(out))
```

```python
import re

class Asm:
    def __init__(self):
        self.lines = []
    def __call__(self, s):
        if s is None: return
        for l in s.strip("\n").split("\n"):
            self.lines.append("  " + l.strip())
    def label(self, name):
        self.lines.append(name + ":")
    def raw(self, s):
        self.lines.append(s)
    def text(self):
        return "\n".join(self.lines) + "\n"

def vr(b, n=1):
    return f"v{b}" if n == 1 else f"v[{b}:{b+n-1}]"
def sr(b, n=1):
    return f"s{b}" if n == 1 else f"s[{b}:{b+n-1}]"

TRANS = ("v_exp_f32", "v_log_f32", "v_rcp_f32", "v_rsq_f32", "v_sqrt_f32", "v_sin_f32", "v_cos_f32", "v_exp_f16", "v_rcp_f16")
_reg = re.compile(r"^(-|abs\()?([vsa])(?:(\d+)|\[(\d+):(\d+)\])\)?$")

def parse_op(tok):
    tok = tok.strip()
    tok = tok.replace("|", "")
    m = _reg.match(tok)
    if m:
        k = m.group(2)
        if m.group(3) is not None:
            return [(k, int(m.group(3)))]
        return [(k, i) for i in range(int(m.group(4)), int(m.group(5)) + 1)]
    if tok in ("vcc",):
        return [("s", 106), ("s", 107)]
    if tok == "vcc_lo": return [("s", 106)]
    if tok == "vcc_hi": return [("s", 107)]
    if tok == "exec":
        return [("x", 0)]
    if tok == "m0":
        return [("m", 0)]
    return []

class Ins:
    pass

def decode(line):
    s = line.split(";")[0].strip()
    if not s or s.endswith(":") or s.startswith("."):
        return None
    parts = s.split(None, 1)
    op = parts[0]
    rest = parts[1] if len(parts) > 1 else ""
    ops = []
    cur = ""
    depth = 0
    for ch in rest:
        if ch == "[": depth += 1
        if ch == "]": depth -= 1
        if ch == "," and depth == 0:
            ops.append(cur.strip()); cur = ""
        else:
            cur += ch
    if cur.strip():
        ops.append(cur.strip())
    mods = ""
    if ops:
        last = ops[-1].split(None, 1)
        if len(last) > 1:
            ops[-1] = last[0]; mods = last[1]
    I = Ins(); I.op = op; I.ops = ops; I.mods = mods; I.text = s
    I.w = []; I.r = []; I.cls = "other"; I.srcc = []; I.srcab = []
    P = [parse_op(o) for o in ops]
    base = op.replace("_e32", "").replace("_e64", "").replace("_sdwa", "").replace("_dpp", "")
    I.base = base
    if op.startswith("v_mfma"):
        I.cls = "mfma"; I.w = P[0]; I.srcab = P[1] + P[2]; I.srcc = P[3]; I.r = I.srcab + I.srcc
        I.passes = 8 if "32x32x16" in op else (4 if "16x16x32" in op else None)
        assert I.passes, op
    elif op.startswith("v_cmp"):
        I.cls = "valu"; I.w = P[0]; I.r = sum(P[1:], [])
    elif base in ("v_readfirstlane_b32", "v_readlane_b32"):
        I.cls = "valu"; I.w = P[0]; I.r = sum(P[1:], [])
    elif base.startswith("v_permlane") and "swap" in base:
        I.cls = "valu"; I.w = P[0] + P[1]; I.r = P[0] + P[1]
    elif base in ("v_add_co_u32", "v_addc_co_u32", "v_sub_co_u32", "v_subb_co_u32"):
        I.cls = "valu"; I.w = P[0] + P[1]; I.r = sum(P[2:], [])
    elif op.startswith("v_"):
        I.cls = "valu"; I.w = P[0]; I.r = sum(P[1:], [])
        if base in ("v_fmac_f32", "v_pk_fmac_f16", "v_dot2c_f32_bf16", "v_dot2c_f32_f16") or "UNUSED_PRESERVE" in mods:
            I.r = I.r + P[0]
        if base == "v_cndmask_b32" and len(ops) == 3:
            I.r = I.r + parse_op("vcc")
    elif op.startswith("ds_"):
        I.cls = "ds"
        if "read" in op or "permute" in op or "swizzle" in op:
            I.w = P[0]; I.r = sum(P[1:], [])
        else:
            I.r = sum(P, [])
    elif op.startswith("buffer_") or op.startswith("global_"):
        I.cls = "vmem"
        if op in ("buffer_wbl2", "buffer_inv"):
            pass
        elif "lds" in mods.split() or "_lds_" in op:
            I.r = sum(P, []) + [("m", 0)]; I.ldsdma = True
        elif "load" in op:
            I.w = P[0]; I.r = sum(P[1:], [])
        elif "atomic" in op:
            I.r = sum(P, [])
            if "sc0" in mods.split():
                I.w = P[0]
        else:
            I.r = sum(P, [])
            I.store_data = P[0] if op.startswith("buffer_") else P[1]
    elif op.startswith("s_load") or op.startswith("s_buffer_load") or op in ("s_memtime", "s_memrealtime") or op.startswith("s_atomic"):
        I.cls = "smem"; I.w = P[0]; I.r = sum(P[1:], [])
    elif op == "s_waitcnt":
        I.cls = "wait"
    elif op == "s_nop":
        I.cls = "nop"
    elif op.startswith("s_cmp") or op.startswith("s_cbranch") or op in ("s_branch", "s_barrier", "s_endpgm", "s_setprio", "s_sleep"):
        I.cls = "salu"; I.r = sum(P, [])
    elif op.startswith("s_"):
        I.cls = "salu"; I.w = P[0]; I.r = sum(P[1:], [])
        if "saveexec" in op:
            I.w = I.w + [("x", 0)]
    return I

def check(lines, name="", verbose=True):
    ins = [(n, decode(l)) for n, l in enumerate(lines)]
    ins = [(n, i) for n, i in ins if i is not None]
    probs = []
    pos = 0
    hist = []
    vm = []; lg = []
    for n, I in ins:
        W = set(I.w); R = set(I.r)
        def need(d, why, P):
            dist = pos - P[0] - 1
            if dist < d:
                probs.append(f"{name}:{n}: need {d} ws have {dist} [{why}]: '{P[1].text}' -> '{I.text}'")
        for P in reversed(hist[-24:]):
            J = P[1]; JW = set(J.w)
            if J.cls == "valu":
                vw = {x for x in JW if x[0] in "va"}
                sw = {x for x in JW if x[0] == "s"}
                if I.cls == "mfma" and vw & R: need(2, "valu->mfma", P)
                if I.cls == "valu":
                    if J.base in TRANS and I.base not in TRANS and vw & R: need(1, "trans->valu", P)
                    if I.base.startswith("v_permlane") and vw & R: need(2, "valu->permlane", P)
                    if I.base in ("v_readfirstlane_b32", "v_readlane_b32") and vw & R: need(1, "valu->readlane", P)
                    if ("dpp" in I.op or "row_" in I.mods or "quad_perm" in I.mods) and vw & R: need(2, "valu->dpp", P)
                    if sw & R: need(2, "valu sgpr->valu", P)
                    if ("sdwa" in J.op or "op_sel" in J.mods) and (vw & (R | W)): need(1, "sdwa/opsel", P)
                if I.cls == "vmem" and sw & R: need(5, "valu sgpr->vmem", P)
                if I.cls in ("salu", "smem") and sw & R: need(1, "valu sgpr->salu (pad)", P)
            if J.cls == "mfma":
                p8 = J.passes == 8
                if I.cls in ("valu", "vmem", "ds") and JW & (R | W): need(12 if p8 else 8, "mfma D->valu/mem", P)
                if I.cls == "mfma":
                    if JW & set(I.srcab): need(12 if p8 else 8, "mfma D->AB", P)
                    if JW & set(I.srcc) and not (J.w == I.srcc and J.passes == I.passes): need(10 if p8 else 6, "mfma D->C overlap", P)
                    if JW & W and not (J.w == I.w): need(10 if p8 else 6, "mfma D->D overlap", P)
                if I.cls == "valu" and set(J.srcc) & W: need(7 if p8 else 3, "mfma C WAR", P)
            if J.cls == "salu" and ("m", 0) in JW and getattr(I, "ldsdma", False): need(1, "m0->ldsdma", P)
            if J.cls == "vmem" and hasattr(J, "store_data") and len(J.store_data) >= 3:
                if set(J.store_data) & W: need(2 if I.cls == "valu" else 1, "store data WAR", P)
        if I.cls == "wait":
            m = re.search(r"vmcnt\((\d+)\)", I.text)
            if m:
                k = int(m.group(1));
                while len(vm) > k: vm.pop(0)
            m = re.search(r"lgkmcnt\((\d+)\)", I.text)
            if m:
                k = int(m.group(1))
                if any(x[2] for x in lg) and k > 0:
                    probs.append(f"{name}:{n}: counted lgkmcnt with smem outstanding")
                while len(lg) > k: lg.pop(0)
        else:
            for q, qn in ((vm, "vm"), (lg, "lgkm")):
                for regs, t, _ in q:
                    if regs & (R | W):
                        probs.append(f"{name}:{n}: {qn} pending '{t}' used by '{I.text}'")
            if I.cls == "vmem":
                vm.append((set(I.w), I.text, False))
                if len(vm) > 63: probs.append(f"{name}:{n}: vmcnt overflow")
            if I.cls == "ds":
                lg.append((set(I.w), I.text, False))
            if I.cls == "smem":
                lg.append((set(I.w), I.text, True))
        hist.append((pos, I))
        if I.cls == "nop":
            pos += int(I.ops[0], 0) + 1
        else:
            pos += 1
    if verbose:
        for p in probs[:40]:
            print("HAZARD", p)
        print(f"check {name}: {len(ins)} instrs, {len(probs)} problems")
    return probs

def kd(name, vgpr, sgpr=102, accum=None):
    accum = accum or (vgpr + 3) // 4 * 4
    return f""".section .rodata,"a"
.p2align 6
.amdhsa_kernel {name}
  .amdhsa_next_free_vgpr {vgpr}
  .amdhsa_next_free_sgpr {sgpr}
  .amdhsa_accum_offset {accum}
  .amdhsa_group_segment_fixed_size 0
  .amdhsa_kernarg_size 80
  .amdhsa_user_sgpr_count 2
  .amdhsa_user_sgpr_kernarg_segment_ptr 1
  .amdhsa_system_sgpr_workgroup_id_x 1
.end_amdhsa_kernel
.text
"""
def khead(name):
    return f""".text
.globl {name}
.p2align 8
.type {name},@function
{name}:
"""

def stamp_begin(a, s0=86):
    a(f"s_memrealtime s[{s0}:{s0+1}]")
    a(f"s_memtime s[{s0+2}:{s0+3}]")
def stamp_end(a, slot, srd, swave, s0=86, vt=0, nw=8):
    a("s_waitcnt vmcnt(0) lgkmcnt(0)")
    a(f"s_memrealtime s[{s0+4}:{s0+5}]")
    a(f"s_memtime s[{s0+6}:{s0+7}]")
    a(f"s_lshl_b32 s{s0+8}, s2, 3")
    a(f"s_add_u32 s{s0+8}, s{s0+8}, s{swave}")
    a(f"s_lshl_b32 s{s0+8}, s{s0+8}, 4")
    a(f"s_add_u32 s{s0+8}, s{s0+8}, {(26<<20) + slot*65536}")
    a("s_waitcnt lgkmcnt(0)")
    a(f"v_mov_b32 v{vt}, s{s0}")
    a(f"v_mov_b32 v{vt+1}, s{s0+4}")
    a(f"v_mov_b32 v{vt+2}, s{s0+2}")
    a(f"v_mov_b32 v{vt+3}, s{s0+6}")
    a(f"v_mov_b32 v{vt+4}, 0")
    a("s_mov_b64 exec, 1")
    a(f"buffer_store_dwordx4 v[{vt}:{vt+3}], v{vt+4}, {srd}, s{s0+8} offen")

class Stamper:
    def __init__(self, on, base=60, slot=0):
        self.on = on; self.base = base; self.n = 0; self.slot = slot; self.ins = "s_memtime"
    def line(self, i):
        self.n = max(self.n, i + 1)
        return f"{self.ins} s[{self.base+2*i}:{self.base+2*i+1}]"
    def st(self, a, i):
        if self.on: a(self.line(i))
    def flush(self, a, srd, swave, vt, stmp):
        if not self.on: return
        a("s_waitcnt vmcnt(0) lgkmcnt(0)")
        a(f"s_lshl_b32 s{stmp}, s2, 3")
        a(f"s_add_u32 s{stmp}, s{stmp}, s{swave}")
        a(f"s_lshl_b32 s{stmp}, s{stmp}, 6")
        a(f"s_add_u32 s{stmp}, s{stmp}, {(28<<20) + self.slot*262144}")
        a(f"v_mov_b32 v{vt+4}, 0")
        a("s_mov_b64 exec, 1")
        for q in range(4):
            for j in range(4):
                i = q*4+j
                a(f"v_mov_b32 v{vt+j}, s{self.base+2*i}" if i < 13 else f"v_mov_b32 v{vt+j}, 0")
            a(f"buffer_store_dwordx4 v[{vt}:{vt+3}], v{vt+4}, {srd}, s{stmp} offen offset:{q*16}")
            a("s_nop 1")
        a("s_mov_b64 exec, -1")

class Q:
    def __init__(self, kind, maxn):
        self.kind = kind; self.q = []; self.maxn = maxn
    def issue(self, tag):
        self.q.append(tag)
        assert len(self.q) <= self.maxn, (self.kind, "too many outstanding", len(self.q))
    def need(self, tags):
        idx = -1
        for i, t in enumerate(self.q):
            if t in tags: idx = i
        if idx < 0: return None
        n = len(self.q) - 1 - idx
        self.q = self.q[idx + 1:]
        return f"s_waitcnt {self.kind}({n})"
    def drain(self):
        self.q = []
        return f"s_waitcnt {self.kind}(0)"
    def copy(self):
        c = Q(self.kind, self.maxn); c.q = list(self.q); return c
```

```python
from asmlib import *
from k2 import WS_Q, WS_KV, WS_O, WS_H, WS_W, WS_G, WS_SIZE

QSCALE = 0.25 * 1.4426950408889634
import struct
def f32(x): return "0x%08x" % struct.unpack("<I", struct.pack("<f", x))[0]

def interleave(a, main, fill, start=0, end=None):
    n = len(main)
    end = n if end is None else end
    ng = end - start
    k = 0
    for i, g in enumerate(main):
        for l in g: a(l)
        if start <= i < end:
            tgt = (len(fill) * (i - start + 1) + ng - 1) // ng
            while k < tgt:
                a(fill[k]); k += 1
    assert k == len(fill)

def gen_k1(name="ffa_kernel", stamps=False):
    a = Asm()
    sWave = 12; sRb = 13; sCg = 14; sT = 15; sT2 = 16; sT3 = 17; sTT = 18; sF0 = 19
    a(f"""
    s_cmp_ge_u32 s2, 256
    s_cbranch_scc1 L_{name}_end
    """)
    if stamps: stamp_begin(a)
    SP = Stamper(stamps == 2)
    SP.st(a, 0)
    a(f"""
    s_load_dwordx4 s[4:7], s[0:1], 0
    s_load_dwordx2 s[8:9], s[0:1], 16
    s_load_dwordx4 s[44:47], s[0:1], 32
    s_load_dwordx2 s[48:49], s[0:1], 48
    s_load_dwordx2 s[10:11], s[0:1], 72
    v_lshrrev_b32 v1, 6, v0
    v_and_b32 v2, 63, v0
    v_readfirstlane_b32 s{sWave}, v1
    s_and_b32 s{sT}, s2, 7
    s_lshr_b32 s{sT2}, s2, 3
    s_and_b32 s{sRb}, s{sT}, 1
    s_lshl_b32 s{sRb}, s{sRb}, 3
    s_and_b32 s{sT3}, s{sT2}, 7
    s_add_u32 s{sRb}, s{sRb}, s{sT3}
    s_lshr_b32 s{sCg}, s{sT}, 1
    s_lshl_b32 s{sCg}, s{sCg}, 2
    s_lshr_b32 s{sT3}, s{sT2}, 3
    s_add_u32 s{sCg}, s{sCg}, s{sT3}
    s_lshr_b32 s{sF0}, s{sCg}, 1
    s_mul_i32 s{sF0}, s{sF0}, 7
    s_and_b32 s{sT}, s{sCg}, 1
    s_lshl_b32 s{sT}, s{sT}, 2
    s_add_u32 s{sF0}, s{sF0}, s{sT}
    s_mov_b32 s22, {2048*1024}
    s_mov_b32 s23, 0x00020000
    s_mov_b32 s26, {512*3072}
    s_mov_b32 s27, 0x00020000
    s_mov_b32 s30, {512*3584}
    s_mov_b32 s31, 0x00020000
    s_mov_b32 s34, {WS_SIZE}
    s_mov_b32 s35, 0x00020000
    s_mov_b32 s39, 0x00020000
    s_mov_b32 s42, 1024
    s_mov_b32 s43, 0x00020000
    s_waitcnt lgkmcnt(0)
    s_mov_b32 s20, s4
    s_mov_b32 s21, s5
    s_mov_b32 s24, s6
    s_mov_b32 s25, s7
    s_mov_b32 s28, s44
    s_mov_b32 s29, s45
    s_mov_b32 s32, s10
    s_mov_b32 s33, s11
    s_mov_b32 s40, s48
    s_mov_b32 s41, s49
    s_cmp_ge_u32 s{sWave}, 4
    s_cbranch_scc1 L_{name}_loader
    """)
    SLOT = [0, 32768, 65536, 98304, 131072]
    jobslot = [4, 0, 1, 2, 3, 4, 0]
    vL = 2; vL16 = 3; vXA = 4
    vWA = 12
    vT = 15; vVO = 16
    vE = 18
    vPk = 34
    NST = 6
    vW = [44 + 4 * i for i in range(NST)]
    vAcc = [68, 84]
    vX = 128
    c = Asm()
    c(f"""
    v_lshlrev_b32 v{vL16}, 4, v{vL}
    s_lshl_b32 s{sTT}, s{sRb}, 2
    s_add_u32 s{sTT}, s{sTT}, s{sWave}
    v_and_b32 v{vT}, 31, v{vL}
    v_lshlrev_b32 v{vE}, 10, v{vT}
    s_lshl_b32 s{sT}, s{sWave}, 15
    v_add_u32 v{vE}, s{sT}, v{vE}
    v_lshrrev_b32 v{vE+1}, 5, v{vL}
    v_and_b32 v{vE+2}, 15, v{vL}
    """)
    for s in range(8):
        c(f"v_or_b32 v{vE+3}, {2*s}, v{vE+1}")
        c(f"v_xor_b32 v{vE+3}, v{vE+3}, v{vE+2}")
        c(f"v_lshl_add_u32 v{vXA+s}, v{vE+3}, 4, v{vE}")
    c(f"""
    v_lshrrev_b32 v{vE}, 5, v{vL}
    v_lshlrev_b32 v{vE}, 9, v{vE}
    v_bfe_u32 v{vE+1}, v{vL}, 2, 2
    v_lshl_add_u32 v{vE}, v{vE+1}, 6, v{vE}
    v_bfe_u32 v{vE+1}, v{vL}, 4, 1
    v_lshl_add_u32 v{vE}, v{vE+1}, 5, v{vE}
    v_and_b32 v{vE+1}, 3, v{vL}
    v_lshl_add_u32 v{vWA}, v{vE+1}, 3, v{vE}
    v_add_u32 v{vWA+1}, 0x10000, v{vWA}
    v_add_u32 v{vWA+2}, 0x20000, v{vWA}
    v_bfe_u32 v{vE}, v{vL}, 4, 1
    v_lshlrev_b32 v{vE}, 17, v{vE}
    v_lshrrev_b32 v{vE+1}, 5, v{vL}
    v_lshl_add_u32 v{vE}, v{vE+1}, 8, v{vE}
    v_and_b32 v{vE+1}, 15, v{vL}
    v_lshl_add_u32 v{vVO}, v{vE+1}, 4, v{vE}
    s_barrier
    """)
    SP.st(c, 1)
    if SP.on: c("s_waitcnt lgkmcnt(0)")
    for s in range(32):
        c(f"ds_read_b128 {vr(vX+4*s,4)}, v{vXA+(s&7)} offset:{(s>>3)*256}")
        if s % 8 == 7 and s < 31: c("s_waitcnt lgkmcnt(4)")
    def wread(job, s):
        base = SLOT[jobslot[job]] + s * 1024
        st = vW[(job * 32 + s) % NST]
        return [f"ds_read_b64_tr_b16 {vr(st,2)}, v{vWA + base//65536} offset:{base%65536}",
                f"ds_read_b64_tr_b16 {vr(st+2,2)}, v{vWA + base//65536} offset:{base%65536+256}"]
    PD = NST - 1
    for s in range(PD):
        for l in wread(0, s): c(l)
    c(f"s_waitcnt lgkmcnt({2*PD})")
    c("s_barrier")
    SP.st(c, 2)
    if SP.on: c("s_waitcnt lgkmcnt(0)")
    def epilogue(job):
        acc = vAcc[job % 2]
        f = []
        if job == 0:
            f.append(f"s_mov_b32 s{sT3}, {f32(QSCALE)}")
            for j in range(16): f.append(f"v_mul_f32 v{acc+j}, s{sT3}, v{acc+j}")
        if job >= 3:
            f.append(f"s_mov_b32 s{sT3}, {f32(-1.4426950408889634)}")
            for h in range(2):
                for j in range(8): f.append(f"v_mul_f32 v{vE+j}, s{sT3}, v{acc+8*h+j}")
                for j in range(8): f.append(f"v_exp_f32 v{vE+j}, v{vE+j}")
                for j in range(8): f.append(f"v_add_f32 v{vE+j}, 1.0, v{vE+j}")
                for j in range(8): f.append(f"v_rcp_f32 v{vE+j}, v{vE+j}")
                for j in range(8): f.append(f"v_mul_f32 v{acc+8*h+j}, v{acc+8*h+j}, v{vE+j}")
        for j in range(8): f.append(f"v_cvt_pk_bf16_f32 v{vPk+j}, v{acc+2*j}, v{acc+2*j+1}")
        if job == 0:
            f += [f"s_lshl_b32 s{sT}, s{sCg}, 17", f"s_lshl_b32 s{sT2}, s{sTT}, 10", f"s_add_u32 s{sT}, s{sT}, s{sT2}",
                  f"s_add_u32 s{sT2}, s{sT}, 65536",
                  f"buffer_store_dwordx4 {vr(vPk,4)}, v{vL16}, s[32:35], s{sT} offen",
                  f"buffer_store_dwordx4 {vr(vPk+4,4)}, v{vL16}, s[32:35], s{sT2} offen"]
        elif job == 1:
            f += [f"s_lshl_b32 s{sT}, s{sCg}, 18", f"s_lshl_b32 s{sT2}, s{sTT}, 10", f"s_add_u32 s{sT}, s{sT}, s{sT2}",
                  f"s_add_u32 s{sT}, s{sT}, {WS_KV}", f"s_add_u32 s{sT2}, s{sT}, 131072",
                  f"buffer_store_dwordx4 {vr(vPk,4)}, v{vL16}, s[32:35], s{sT} offen",
                  f"buffer_store_dwordx4 {vr(vPk+4,4)}, v{vL16}, s[32:35], s{sT2} offen"]
        elif job == 2:
            f += [f"s_lshl_b32 s{sT}, s{sCg}, 18", f"s_lshl_b32 s{sT2}, s{sTT}, 10", f"s_add_u32 s{sT}, s{sT}, s{sT2}",
                  f"s_add_u32 s{sT}, s{sT}, {WS_KV + 65536}",
                  f"buffer_store_dwordx4 {vr(vPk,4)}, v{vVO}, s[32:35], s{sT} offen",
                  f"buffer_store_dwordx4 {vr(vPk+4,4)}, v{vVO}, s[32:35], s{sT} offen offset:512"]
        else:
            f += [f"s_mul_i32 s{sT}, s{sTT}, {112*1024}", f"s_add_u32 s{sT2}, s{sF0}, {job-3}", f"s_lshl_b32 s{sT2}, s{sT2}, 11",
                  f"s_add_u32 s{sT}, s{sT}, s{sT2}", f"s_add_u32 s{sT}, s{sT}, {WS_H}",
                  f"buffer_store_dwordx4 {vr(vPk,4)}, v{vL16}, s[32:35], s{sT} offen",
                  f"buffer_store_dwordx4 {vr(vPk+4,4)}, v{vL16}, s[32:35], s{sT} offen offset:1024"]
        return f
    def job_main(job, last):
        acc = vAcc[job % 2]
        groups = []
        for s in range(32):
            g = []
            st = vW[(job * 32 + s) % NST]
            nxt = s + PD
            if s == 32 - PD and not last:
                pass
            rem = min(PD - 1, (31 - s) if last else PD - 1)
            g.append(f"s_waitcnt lgkmcnt({2*rem})")
            cc = "0" if s == 0 else vr(acc, 16)
            if job == 2:
                g.append(f"v_mfma_f32_32x32x16_bf16 {vr(acc,16)}, {vr(vX+4*s,4)}, {vr(st,4)}, {cc}")
            else:
                g.append(f"v_mfma_f32_32x32x16_bf16 {vr(acc,16)}, {vr(st,4)}, {vr(vX+4*s,4)}, {cc}")
            if nxt == 32 and not last:
                g.append("s_barrier")
            if nxt < 32:
                g += wread(job, nxt)
            elif not last:
                g += wread(job + 1, nxt - 32)
            groups.append(g)
        return groups
    for job in range(6):
        if job < 5:
            interleave(c, job_main(job, False), epilogue(job - 1) if job > 0 else [], start=2, end=30)
            SP.st(c, 3 + job)
            if SP.on: c("s_waitcnt lgkmcnt(0)")
    c(f"s_bitcmp1_b32 s{sCg}, 0")
    c(f"s_cbranch_scc1 L_{name}_odd")
    ce = Asm()
    interleave(ce, job_main(5, False), epilogue(4), start=2, end=30)
    SP.st(ce, 8)
    if SP.on: ce("s_waitcnt lgkmcnt(0)")
    interleave(ce, job_main(6, True), epilogue(5), start=2, end=30)
    SP.st(ce, 9)
    if SP.on: ce("s_waitcnt lgkmcnt(0)")
    ce("s_nop 11")
    for l in epilogue(6): ce(l)
    SP.st(ce, 10)
    if SP.on: ce("s_waitcnt vmcnt(0)")
    SP.st(ce, 11)
    SP.flush(ce, "s[32:35]", sWave, 4, sT)
    if stamps: stamp_end(ce, 0, "s[32:35]", sWave, vt=4)
    ce("s_endpgm")
    co = Asm()
    co.label(f"L_{name}_odd")
    jm = job_main(5, True)
    jm[32 - PD].append("s_barrier")
    interleave(co, jm, epilogue(4), start=2, end=30)
    co(f"s_cmp_lg_u32 s{sCg}, 1")
    co(f"s_cbranch_scc1 L_{name}_nogate")
    cg = Asm()
    cg(f"v_lshrrev_b32 v{vT}, 5, v{vL}")
    cg(f"v_lshlrev_b32 v{vT}, 4, v{vT}")
    acc = vAcc[0]
    for s in range(PD):
        cg(f"buffer_load_dwordx4 {vr(vW[s%NST],4)}, v{vT}, s[40:43], 0 offen offset:{s*32}")
    for s in range(32):
        rem = min(PD - 1, 31 - s)
        cg(f"s_waitcnt vmcnt({rem})")
        cc = "0" if s == 0 else vr(acc, 16)
        cg(f"v_mfma_f32_32x32x16_bf16 {vr(acc,16)}, {vr(vW[s%NST],4)}, {vr(vX+4*s,4)}, {cc}")
        if s + PD < 32:
            cg(f"buffer_load_dwordx4 {vr(vW[(s+PD)%NST],4)}, v{vT}, s[40:43], 0 offen offset:{(s+PD)*32}")
    cg(f"""
    s_mov_b32 s{sT3}, {f32(-1.4426950408889634)}
    s_lshl_b32 s{sT}, s{sTT}, 7
    s_add_u32 s{sT}, s{sT}, {WS_G}
    v_lshlrev_b32 v{vT}, 2, v{vL}
    s_nop 8
    v_mul_f32 v{vE}, s{sT3}, v{acc}
    v_exp_f32 v{vE}, v{vE}
    s_nop 0
    v_add_f32 v{vE}, 1.0, v{vE}
    v_rcp_f32 v{vE}, v{vE}
    s_mov_b64 exec, 0xffffffff
    buffer_store_dword v{vE}, v{vT}, s[32:35], s{sT} offen
    s_mov_b64 exec, -1
    """)
    cn = Asm()
    cn.label(f"L_{name}_nogate")
    cn("s_nop 11")
    for l in epilogue(5): cn(l)
    if stamps: stamp_end(cn, 0, "s[32:35]", sWave, vt=4)
    cn("s_endpgm")
    l = Asm()
    l.label(f"L_{name}_loader")
    sJ = 50; sXB = 51; sM = 52; sSo = 53
    vSw = 8
    vWq = 24; vW1 = 25; vR = 26
    l(f"s_sub_u32 s{sJ}, s{sWave}, 4")
    for r in range(16):
        l(f"v_xor_b32 v{vSw+r}, {r}, v{vL}")
        l(f"v_lshlrev_b32 v{vSw+r}, 4, v{vSw+r}")
    l(f"""
    v_lshrrev_b32 v{vR}, 2, v{vL}
    v_and_b32 v{vR+1}, 3, v{vL}
    v_lshlrev_b32 v{vR+1}, 4, v{vR+1}
    v_mul_u32_u24 v{vWq}, 3072, v{vR}
    v_add_u32 v{vWq}, v{vWq}, v{vR+1}
    v_mul_u32_u24 v{vW1}, 3584, v{vR}
    v_add_u32 v{vW1}, v{vW1}, v{vR+1}
    """)
    def wdma(job):
        slot = SLOT[jobslot[job]]
        if job < 3:
            ldw, srd, vo = 3072, "s[24:27]", vWq
            l(f"s_lshl_b32 s{sSo}, s{sCg}, 6")
            if job: l(f"s_add_u32 s{sSo}, s{sSo}, {job*1024}")
        else:
            ldw, srd, vo = 3584, "s[28:31]", vW1
            l(f"s_add_u32 s{sSo}, s{sF0}, {job-3}")
            l(f"s_lshl_b32 s{sSo}, s{sSo}, 6")
        l(f"s_mul_i32 s{sT}, s{sJ}, {128*ldw}")
        l(f"s_add_u32 s{sSo}, s{sSo}, s{sT}")
        l(f"s_lshl_b32 s{sM}, s{sJ}, 13")
        l(f"s_add_u32 s{sM}, s{sM}, {slot}")
        for i in range(8):
            l(f"s_mov_b32 m0, s{sM}")
            if i < 7: l(f"s_add_u32 s{sM}, s{sM}, 1024")
            else: l("s_nop 0")
            l(f"buffer_load_dwordx4 v{vo}, {srd}, s{sSo} offen lds")
            if i < 7: l(f"s_add_u32 s{sSo}, s{sSo}, {16*ldw}")
    l(f"s_lshl_b32 s{sXB}, s{sRb}, 17")
    l(f"s_lshl_b32 s{sM}, s{sJ}, 15")
    l(f"s_add_u32 s{sXB}, s{sXB}, s{sM}")
    for r in range(32):
        if r % 4 == 0:
            l(f"s_mov_b32 m0, s{sM}")
            l(f"s_add_u32 s{sM}, s{sM}, 4096")
        l(f"buffer_load_dwordx4 v{vSw+(r&15)}, s[20:23], s{sXB} offen offset:{(r%4)*1024} lds")
        if r % 4 == 3: l(f"s_add_u32 s{sXB}, s{sXB}, 4096")
    wdma(0)
    l("s_waitcnt vmcnt(0)")
    l("s_barrier")
    l("s_barrier")
    for job in (1, 2, 3, 4): wdma(job)
    l("s_waitcnt vmcnt(24)")
    l("s_barrier")
    l("s_waitcnt vmcnt(16)")
    l("s_barrier")
    wdma(5)
    l("s_waitcnt vmcnt(16)")
    l("s_barrier")
    l(f"s_bitcmp1_b32 s{sCg}, 0")
    l(f"s_cbranch_scc1 L_{name}_lodd")
    wdma(6)
    l("""
    s_waitcnt vmcnt(16)
    s_barrier
    s_waitcnt vmcnt(8)
    s_barrier
    s_waitcnt vmcnt(0)
    s_barrier
    s_endpgm
    """)
    lo = Asm()
    lo.label(f"L_{name}_lodd")
    sBand = 54; sB2 = 55
    vRo = 28; vRa = 29; vD = 32
    lo(f"""
    s_lshl_b32 s{sBand}, s{sRb}, 3
    s_lshr_b32 s{sT}, s{sCg}, 1
    s_add_u32 s{sBand}, s{sBand}, s{sT}
    v_lshrrev_b32 v{vR}, 4, v{vL}
    v_lshlrev_b32 v{vR}, 10, v{vR}
    v_and_b32 v{vR+1}, 15, v{vL}
    v_lshl_add_u32 v{vRo}, v{vR+1}, 4, v{vR}
    v_lshrrev_b32 v{vR}, 5, v{vL}
    v_lshlrev_b32 v{vR}, 10, v{vR}
    v_bfe_u32 v{vR+1}, v{vL}, 2, 2
    v_lshl_add_u32 v{vR}, v{vR+1}, 8, v{vR}
    v_bfe_u32 v{vR+1}, v{vL}, 4, 1
    v_lshl_add_u32 v{vR}, v{vR+1}, 5, v{vR}
    v_and_b32 v{vR+1}, 3, v{vL}
    v_lshl_add_u32 v{vRa}, v{vR+1}, 3, v{vR}
    s_lshl_b32 s{sT}, s{sJ}, 12
    v_add_u32 v{vRa}, s{sT}, v{vRa}
    v_lshlrev_b32 v{vR}, 4, v{vL}
    s_mov_b32 s{sB2}, 0
    """)
    lo(f"""
    s_cmp_lt_u32 s{sBand}, 32
    s_cselect_b32 s36, s8, s46
    s_cselect_b32 s37, s9, s47
    s_mov_b32 s38, {1792*1024}
    s_cselect_b32 s38, {512*1024}, s38
    s_cselect_b32 s{sT}, 0, 32
    s_sub_u32 s{sT}, s{sBand}, s{sT}
    s_lshl_b32 s{sSo}, s{sT}, 14
    s_lshl_b32 s{sT}, s{sJ}, 8
    s_add_u32 s{sSo}, s{sSo}, s{sT}
    s_lshl_b32 s{sM}, s{sJ}, 12
    """)
    for i in range(4):
        lo(f"s_mov_b32 m0, s{sM}")
        lo(f"s_add_u32 s{sM}, s{sM}, 1024")
        lo(f"buffer_load_dwordx4 v{vRo}, s[36:39], s{sSo} offen lds")
        lo(f"s_add_u32 s{sSo}, s{sSo}, 4096")
    lo(f"""
    s_mov_b32 s56, s46
    s_mov_b32 s57, s47
    s_mov_b32 s58, {1792*1024}
    s_mov_b32 s59, 0x00020000
    s_add_u32 s{sT}, s{sBand}, 96
    s_lshl_b32 s{sSo}, s{sT}, 14
    s_lshl_b32 s{sT}, s{sJ}, 8
    s_add_u32 s{sSo}, s{sSo}, s{sT}
    s_lshl_b32 s{sM}, s{sJ}, 12
    s_add_u32 s{sM}, s{sM}, 16384
    """)
    for i in range(4):
        lo(f"s_mov_b32 m0, s{sM}")
        lo(f"s_add_u32 s{sM}, s{sM}, 1024")
        lo(f"buffer_load_dwordx4 v{vRo}, s[56:59], s{sSo} offen lds")
        lo(f"s_add_u32 s{sSo}, s{sSo}, 4096")
    lo("s_waitcnt vmcnt(16)")
    lo("s_barrier")
    lo("s_waitcnt vmcnt(0)")
    lo("s_barrier")
    for b in range(2):
        for n in range(4):
            lo(f"ds_read_b64_tr_b16 {vr(vD+16*b+4*n,2)}, v{vRa} offset:{b*16384+n*64}")
            lo(f"ds_read_b64_tr_b16 {vr(vD+16*b+4*n+2,2)}, v{vRa} offset:{b*16384+n*64+2048}")
    lo(f"""
    s_mul_i32 s{sT}, s{sJ}, {4*144*1024}
    s_lshl_b32 s{sT2}, s{sBand}, 10
    s_add_u32 s{sT}, s{sT}, s{sT2}
    s_add_u32 s{sT}, s{sT}, {WS_W}
    s_add_u32 s{sT2}, s{sT}, {128*1024}
    s_waitcnt lgkmcnt(0)
    """)
    for n in range(4):
        lo(f"buffer_store_dwordx4 {vr(vD+4*n,4)}, v{vR}, s[32:35], s{sT} offen")
        if n < 3: lo(f"s_add_u32 s{sT}, s{sT}, {144*1024}")
    lo(f"s_cmp_ge_u32 s{sBand}, 16")
    lo(f"s_cbranch_scc1 L_{name}_banddone")
    for n in range(4):
        lo(f"buffer_store_dwordx4 {vr(vD+16+4*n,4)}, v{vR}, s[32:35], s{sT2} offen")
        if n < 3: lo(f"s_add_u32 s{sT2}, s{sT2}, {144*1024}")
    lo.label(f"L_{name}_banddone")
    lo("s_barrier")
    lo.label(f"L_{name}_end")
    lo("s_endpgm")
    check(a.lines + c.lines + ce.lines, name + "_even")
    check(a.lines + c.lines + co.lines + cg.lines + cn.lines, name + "_odd_gate")
    check(a.lines + c.lines + co.lines + cn.lines, name + "_odd")
    check(a.lines + l.lines, name + "_loader")
    check(a.lines + l.lines[:-7] + lo.lines, name + "_loader_odd")
    return khead(name) + a.text() + c.text() + ce.text() + co.text() + cg.text() + cn.text() + l.text() + lo.text() + kd(name, 256, 102)

if __name__ == "__main__":
    hdr = "; @launch kernel=ffa_kernel grid=(256,1,1) block=(512,1,1) lds=163840\n" + '.amdgcn_target "amdgcn-amd-amdhsa--gfx950"\n'
    open("k1.s", "w").write(hdr + gen_k1())
    open("k1s.s", "w").write(hdr + gen_k1(stamps=2))
```

```python
from asmlib import *
from k2 import WS_Q, WS_KV, WS_O, WS_H, WS_W, WS_G, WS_SIZE
from k1 import f32, QSCALE

def spread(groups, fill, start=0, end=None):
    end = len(groups) if end is None else end
    ng = end - start
    k = 0
    for i in range(start, end):
        tgt = (len(fill) * (i - start + 1) + ng - 1) // ng
        while k < tgt:
            groups[i].append(fill[k]); k += 1
    assert k == len(fill)

def gen_k1(name="ffa_kernel", stamps=False):
    a = Asm()
    sWave = 12; sRb = 13; sCg = 14; sT = 15; sT2 = 16; sT3 = 17; sTT = 18; sFA = 19; sFB = 50; sOdd = 51
    a(f"""
    s_cmp_ge_u32 s2, 256
    s_cbranch_scc1 L_{name}_end
    """)
    if stamps: stamp_begin(a)
    SP = Stamper(stamps == 2, base=60)
    SP.st(a, 0)
    a(f"""
    s_load_dwordx4 s[4:7], s[0:1], 0
    s_load_dwordx2 s[8:9], s[0:1], 16
    s_load_dwordx4 s[44:47], s[0:1], 32
    s_load_dwordx2 s[48:49], s[0:1], 48
    s_load_dwordx2 s[10:11], s[0:1], 72
    v_lshrrev_b32 v1, 6, v0
    v_and_b32 v2, 63, v0
    v_readfirstlane_b32 s{sWave}, v1
    s_and_b32 s{sT}, s2, 7
    s_lshr_b32 s{sT2}, s2, 3
    s_and_b32 s{sRb}, s{sT}, 1
    s_lshl_b32 s{sRb}, s{sRb}, 3
    s_and_b32 s{sT3}, s{sT2}, 7
    s_add_u32 s{sRb}, s{sRb}, s{sT3}
    s_lshr_b32 s{sCg}, s{sT}, 1
    s_lshl_b32 s{sCg}, s{sCg}, 2
    s_lshr_b32 s{sT3}, s{sT2}, 3
    s_add_u32 s{sCg}, s{sCg}, s{sT3}
    s_and_b32 s{sOdd}, s{sCg}, 1
    s_lshr_b32 s{sT}, s{sCg}, 2
    s_mul_i32 s{sT}, s{sT}, 14
    s_and_b32 s{sT2}, s{sCg}, 3
    s_lshl_b32 s{sT3}, s{sT2}, 2
    s_add_u32 s{sFA}, s{sT}, s{sT3}
    s_add_u32 s{sFB}, s{sFA}, 2
    s_cmp_eq_u32 s{sT2}, 3
    s_cselect_b32 s{sT3}, 7, 0
    s_add_u32 s{sT3}, s{sT3}, s{sT}
    s_cmp_eq_u32 s{sT2}, 3
    s_cselect_b32 s{sFB}, s{sT3}, s{sFB}
    s_mov_b32 s22, {2048*1024}
    s_mov_b32 s23, 0x00020000
    s_mov_b32 s26, {512*3072}
    s_mov_b32 s27, 0x00020000
    s_mov_b32 s30, {512*3584}
    s_mov_b32 s31, 0x00020000
    s_mov_b32 s34, {WS_SIZE}
    s_mov_b32 s35, 0x00020000
    s_mov_b32 s39, 0x00020000
    s_mov_b32 s42, 1024
    s_mov_b32 s43, 0x00020000
    s_waitcnt lgkmcnt(0)
    s_mov_b32 s20, s4
    s_mov_b32 s21, s5
    s_mov_b32 s24, s6
    s_mov_b32 s25, s7
    s_mov_b32 s28, s44
    s_mov_b32 s29, s45
    s_mov_b32 s32, s10
    s_mov_b32 s33, s11
    s_mov_b32 s40, s48
    s_mov_b32 s41, s49
    s_cmp_lt_u32 s{sWave}, 4
    s_cbranch_scc1 L_{name}_comp
    """)
    NSLOT = 5; SLOTB = 32768
    slot = lambda st: (st % NSLOT) * SLOTB
    XO, QO, VO = 0, 16384, 24576
    vL = 2
    l = Asm()
    sJ = 52; sM = 53; sSo = 54; sXb = 55; sQb = 56; sVb = 57; sFb = 58
    vXe = 4; vXo = 5; vQk = 6; vVs = 7; vFp = 8; vFs = 9; vR = 10
    l(f"""
    s_sub_u32 s{sJ}, s{sWave}, 4
    v_lshrrev_b32 v{vR}, 3, v{vL}
    v_and_b32 v{vR+1}, 7, v{vL}
    v_lshrrev_b32 v{vR+2}, 4, v{vL}
    v_xor_b32 v{vR+3}, v{vR+1}, v{vR+2}
    v_lshlrev_b32 v{vR+3}, 4, v{vR+3}
    v_lshl_add_u32 v{vXe}, v{vR}, 10, v{vR+3}
    v_xor_b32 v{vXo}, 64, v{vXe}
    v_and_b32 v{vR+2}, 1, v{vR+2}
    v_lshlrev_b32 v{vR+2}, 2, v{vR+2}
    v_xor_b32 v{vR+3}, v{vR+1}, v{vR+2}
    v_lshlrev_b32 v{vR+3}, 4, v{vR+3}
    v_mul_u32_u24 v{vQk}, 3072, v{vR}
    v_add_u32 v{vQk}, v{vQk}, v{vR+3}
    v_mul_u32_u24 v{vFp}, 3584, v{vR}
    v_add_u32 v{vFp}, v{vFp}, v{vR+3}
    v_lshrrev_b32 v{vR}, 2, v{vL}
    v_and_b32 v{vR+1}, 3, v{vL}
    v_lshlrev_b32 v{vR+1}, 4, v{vR+1}
    v_mul_u32_u24 v{vVs}, 3072, v{vR}
    v_add_u32 v{vVs}, v{vVs}, v{vR+1}
    v_mul_u32_u24 v{vFs}, 3584, v{vR}
    v_add_u32 v{vFs}, v{vFs}, v{vR+1}
    s_lshl_b32 s{sXb}, s{sRb}, 17
    s_lshl_b32 s{sT}, s{sJ}, 15
    s_add_u32 s{sXb}, s{sXb}, s{sT}
    s_lshr_b32 s{sQb}, s{sCg}, 1
    s_lshl_b32 s{sQb}, s{sQb}, 7
    s_lshl_b32 s{sT}, s{sOdd}, 10
    s_add_u32 s{sQb}, s{sQb}, s{sT}
    s_mul_i32 s{sT}, s{sJ}, {16*3072}
    s_add_u32 s{sQb}, s{sQb}, s{sT}
    s_lshl_b32 s{sVb}, s{sCg}, 6
    s_add_u32 s{sVb}, s{sVb}, 2048
    s_add_u32 s{sVb}, s{sVb}, s{sT}
    """)
    def dma(L, vo, srd, m0expr_base, m0j, src_base_sreg, src_add):
        L(f"s_add_u32 s{sM}, s{m0j}, {m0expr_base}")
        L(f"s_mov_b32 m0, s{sM}")
        L(f"s_add_u32 s{sSo}, s{src_base_sreg}, {src_add}")
        L(f"buffer_load_dwordx4 v{vo}, {srd}, s{sSo} offen lds")
    sJ4k, sJ2k, sJ1k, sJ8k = 96, 97, 98, 99
    l(f"""
    s_lshl_b32 s{sJ4k}, s{sJ}, 12
    s_lshl_b32 s{sJ2k}, s{sJ}, 11
    s_lshl_b32 s{sJ1k}, s{sJ}, 10
    s_lshl_b32 s{sJ8k}, s{sJ}, 13
    """)
    def stage_dma(L, st, odd):
        n = 0
        if st < 8:
            for i in range(4):
                dma(L, vXe if i % 2 == 0 else vXo, "s[20:23]", slot(st) + XO + i * 1024, sJ4k, sXb, i * 8192 + st * 128); n += 1
            for i in range(2):
                dma(L, vQk, "s[24:27]", slot(st) + QO + i * 1024, sJ2k, sQb, (st * 64 + i * 8) * 3072); n += 1
            dma(L, vVs, "s[24:27]", slot(st) + VO, sJ1k, sVb, st * 64 * 3072); n += 1
        else:
            h = (st - 8) % 2
            sF = sFA if st < 10 else sFB
            if st >= 10 and odd:
                L(f"s_lshl_b32 s{sFb}, s{sF}, 6")
                L(f"s_mul_i32 s{sT}, s{sJ}, {64*3584}")
                L(f"s_add_u32 s{sFb}, s{sFb}, s{sT}")
                for i in range(4):
                    dma(L, vFs, "s[28:31]", slot(st) + i * 1024, sJ4k, sFb, (h * 256 + i * 16) * 3584); n += 1
            else:
                L(f"s_lshl_b32 s{sFb}, s{sF}, 6")
                L(f"s_mul_i32 s{sT}, s{sJ}, {64*3584}")
                L(f"s_add_u32 s{sFb}, s{sFb}, s{sT}")
                for i in range(8):
                    dma(L, vFp, "s[28:31]", slot(st) + i * 1024, sJ8k, sFb, (h * 256 + i * 8) * 3584); n += 1
        return n
    def loader_seq(L, odd, first, last, vq):
        for st in range(first, last + 1):
            w = vq.need({st})
            if w: L(w)
            if st in (0, 1, 4, 8): SP.st(L, {0: 4, 1: 5, 4: 6, 8: 7}[st])
            L("s_barrier")
            nx = st + 3
            if st >= 2 and nx <= 11:
                for _ in range(stage_dma(L, nx, odd)): vq.issue(nx)
    vq = Q("vmcnt", 63)
    SP.st(l, 1)
    for st in range(5):
        for _ in range(stage_dma(l, st, False)): vq.issue(st)
        if st == 0: SP.st(l, 2)
    SP.st(l, 3)
    loader_seq(l, False, 0, 6, vq)
    l(f"s_cmp_lg_u32 s{sOdd}, 0")
    l(f"s_cbranch_scc1 L_{name}_lodd")
    le = Asm(); vqe = vq.copy()
    loader_seq(le, False, 7, 11, vqe)
    SP.st(le, 8); SP.st(le, 9)
    SP.flush(le, "s[32:35]", sWave, 20, sT)
    le("s_endpgm")
    lo = Asm(); vqo = vq.copy()
    lo.label(f"L_{name}_lodd")
    loader_seq(lo, True, 7, 9, vqo)
    RB = slot(7)
    sBand = 100
    vRo = 16; vRa = 17; vD = 20
    lo(f"""
    s_lshl_b32 s{sBand}, s{sRb}, 3
    s_lshr_b32 s{sT}, s{sCg}, 1
    s_add_u32 s{sBand}, s{sBand}, s{sT}
    v_lshrrev_b32 v{vR}, 4, v{vL}
    v_lshlrev_b32 v{vR}, 10, v{vR}
    v_and_b32 v{vR+1}, 15, v{vL}
    v_lshl_add_u32 v{vRo}, v{vR+1}, 4, v{vR}
    v_lshrrev_b32 v{vR}, 5, v{vL}
    v_lshlrev_b32 v{vR}, 10, v{vR}
    v_bfe_u32 v{vR+1}, v{vL}, 2, 2
    v_lshl_add_u32 v{vR}, v{vR+1}, 8, v{vR}
    v_bfe_u32 v{vR+1}, v{vL}, 4, 1
    v_lshl_add_u32 v{vR}, v{vR+1}, 5, v{vR}
    v_and_b32 v{vR+1}, 3, v{vL}
    v_lshl_add_u32 v{vRa}, v{vR+1}, 3, v{vR}
    s_add_u32 s{sT}, s{sJ4k}, {RB}
    v_add_u32 v{vRa}, s{sT}, v{vRa}
    v_lshlrev_b32 v{vR}, 4, v{vL}
    s_cmp_lt_u32 s{sBand}, 32
    s_cselect_b32 s36, s8, s46
    s_cselect_b32 s37, s9, s47
    s_mov_b32 s38, {1792*1024}
    s_cselect_b32 s38, {512*1024}, s38
    s_cselect_b32 s{sT}, 0, 32
    s_sub_u32 s{sT}, s{sBand}, s{sT}
    s_lshl_b32 s{sFb}, s{sT}, 14
    s_lshl_b32 s{sT}, s{sJ}, 8
    s_add_u32 s{sFb}, s{sFb}, s{sT}
    """)
    for i in range(4):
        dma(lo, vRo, "s[36:39]", RB + i * 1024, sJ4k, sFb, i * 4096); vqo.issue("band")
    lo(f"""
    s_mov_b32 s4, s46
    s_mov_b32 s5, s47
    s_mov_b32 s6, {1792*1024}
    s_mov_b32 s7, 0x00020000
    s_add_u32 s{sT}, s{sBand}, 96
    s_lshl_b32 s{sFb}, s{sT}, 14
    s_lshl_b32 s{sT}, s{sJ}, 8
    s_add_u32 s{sFb}, s{sFb}, s{sT}
    """)
    for i in range(4):
        dma(lo, vRo, "s[4:7]", RB + 16384 + i * 1024, sJ4k, sFb, i * 4096); vqo.issue("band")
    loader_seq(lo, True, 10, 11, vqo)
    lo(vqo.drain())
    for b in range(2):
        for n in range(4):
            lo(f"ds_read_b64_tr_b16 {vr(vD+16*b+4*n,2)}, v{vRa} offset:{b*16384+n*64}")
            lo(f"ds_read_b64_tr_b16 {vr(vD+16*b+4*n+2,2)}, v{vRa} offset:{b*16384+n*64+2048}")
        if b == 0: lo("s_waitcnt lgkmcnt(4)")
    lo(f"""
    s_mul_i32 s{sT}, s{sJ}, {4*144*1024}
    s_lshl_b32 s{sT2}, s{sBand}, 10
    s_add_u32 s{sT}, s{sT}, s{sT2}
    s_add_u32 s{sT}, s{sT}, {WS_W}
    s_add_u32 s{sT2}, s{sT}, {128*1024}
    s_waitcnt lgkmcnt(0)
    """)
    for n in range(4):
        lo(f"buffer_store_dwordx4 {vr(vD+4*n,4)}, v{vR}, s[32:35], s{sT} offen")
        if n < 3: lo(f"s_add_u32 s{sT}, s{sT}, {144*1024}")
    lo(f"s_cmp_ge_u32 s{sBand}, 16")
    lo(f"s_cbranch_scc1 L_{name}_end")
    for n in range(4):
        lo(f"buffer_store_dwordx4 {vr(vD+16+4*n,4)}, v{vR}, s[32:35], s{sT2} offen")
        if n < 3: lo(f"s_add_u32 s{sT2}, s{sT2}, {144*1024}")
    lo.label(f"L_{name}_end")
    lo("s_endpgm")
    vL16 = 3; vXA = 4
    vPA = 8
    vSA = 10
    vVO = 11; vT = 1
    vE = 12
    vPk = 20
    NW = 8
    vW = [28 + 4 * i for i in range(NW)]
    vAcc = [60, 76, 92, 108]
    vX = 128
    c = Asm()
    c.label(f"L_{name}_comp")
    c(f"""
    v_lshlrev_b32 v{vL16}, 4, v{vL}
    s_lshl_b32 s{sTT}, s{sRb}, 2
    s_add_u32 s{sTT}, s{sTT}, s{sWave}
    v_and_b32 v{vT}, 31, v{vL}
    v_lshlrev_b32 v{vE}, 7, v{vT}
    s_lshl_b32 s{sT}, s{sWave}, 12
    v_add_u32 v{vE}, s{sT}, v{vE}
    v_lshrrev_b32 v{vE+1}, 5, v{vL}
    v_bfe_u32 v{vE+2}, v{vL}, 1, 3
    """)
    for s in range(4):
        c(f"v_or_b32 v{vE+3}, {2*s}, v{vE+1}")
        c(f"v_xor_b32 v{vE+3}, v{vE+3}, v{vE+2}")
        c(f"v_lshl_add_u32 v{vXA+s}, v{vE+3}, 4, v{vE}")
    c(f"""
    v_bfe_u32 v{vE}, v{vL}, 4, 1
    v_lshlrev_b32 v{vE}, 5, v{vE}
    v_and_b32 v{vE+1}, 3, v{vL}
    v_lshl_add_u32 v{vE}, v{vE+1}, 3, v{vE}
    v_lshrrev_b32 v{vE+1}, 5, v{vL}
    v_lshlrev_b32 v{vE+1}, 3, v{vE+1}
    v_bfe_u32 v{vE+2}, v{vL}, 2, 2
    v_add_u32 v{vE+1}, v{vE+1}, v{vE+2}
    v_lshl_add_u32 v{vSA}, v{vE+1}, 6, v{vE}
    v_lshl_add_u32 v{vPA}, v{vE+1}, 7, v{vE}
    v_bfe_u32 v{vE+2}, v{vL}, 3, 1
    v_lshl_add_u32 v{vPA}, v{vE+2}, 6, v{vPA}
    v_xor_b32 v{vPA+1}, 64, v{vPA}
    v_bfe_u32 v{vE}, v{vL}, 4, 1
    v_lshlrev_b32 v{vE}, 17, v{vE}
    v_lshrrev_b32 v{vE+1}, 5, v{vL}
    v_lshl_add_u32 v{vE}, v{vE+1}, 8, v{vE}
    v_and_b32 v{vE+1}, 15, v{vL}
    v_lshl_add_u32 v{vVO}, v{vE+1}, 4, v{vE}
    """)
    addr_regs = [vXA, vXA + 1, vXA + 2, vXA + 3, vPA, vPA + 1, vSA]
    class St: pass
    S = St(); S.win = {r: 0 for r in addr_regs}; S.wi = 0
    def lds_addr(out, reg, byte):
        w = S.win[reg]
        if not (0 <= byte - w <= 65535 - 512):
            nw_ = (byte // 32768) * 32768
            out.append(f"v_add_u32 v{reg}, {nw_ - w}, v{reg}" if nw_ - w >= 0 else f"v_subrev_u32 v{reg}, {w - nw_}, v{reg}")
            S.win[reg] = nw_; w = nw_
        return byte - w
    lq = Q("lgkmcnt", 15)
    def units(odd):
        U = []
        for st in range(8):
            for s in range(4):
                ks = st * 4 + s
                U.append(dict(st=st, ks=ks, acc=0, kind="pair", nt=0, base=slot(st) + QO + s * 2048, x=True))
                U.append(dict(st=st, ks=ks, acc=1, kind="pair", nt=1, base=slot(st) + QO + s * 2048))
                U.append(dict(st=st, ks=ks, acc=2, kind="single", base=slot(st) + VO + s * 1024, swap=True))
        for ks in range(32):
            st = 8 + ks // 16
            for nt in range(2):
                U.append(dict(st=st, ks=ks, acc=nt, kind="pair", nt=nt, base=slot(st) + (ks % 16) * 2048))
        for t in range(1 if odd else 2):
            for ks in range(32):
                st = 10 + ks // 16
                if odd: U.append(dict(st=st, ks=ks, acc=2, kind="single", base=slot(st) + (ks % 16) * 1024))
                else: U.append(dict(st=st, ks=ks, acc=2 + t, kind="pair", nt=t, base=slot(st) + (ks % 16) * 2048))
        for i, u in enumerate(U): u["i"] = i
        return U
    def emit_read(out, u, lq, barriers_done):
        if u["st"] not in barriers_done:
            out.append("s_barrier"); barriers_done.add(u["st"])
        if u.get("x"):
            s = u["ks"] % 4
            off = lds_addr(out, vXA + s, slot(u["st"]) + XO)
            out.append(f"ds_read_b128 {vr(vX+4*u['ks'],4)}, v{vXA+s} offset:{off}")
            lq.issue(("x", u["ks"]))
        w = vW[u["i"] % NW]
        if u["kind"] == "pair":
            r = vPA + u["nt"]; d = 512
        else:
            r = vSA; d = 256
        off = lds_addr(out, r, u["base"])
        out.append(f"ds_read_b64_tr_b16 {vr(w,2)}, v{r} offset:{off}"); lq.issue(("w", u["i"]))
        out.append(f"ds_read_b64_tr_b16 {vr(w+2,2)}, v{r} offset:{off+d}"); lq.issue(("w", u["i"]))
    def group(u, U, lq, bd, PD):
        g = []
        w = lq.need({("w", u["i"]), ("x", u["ks"])})
        if w: g.append(w)
        acc = vAcc[u["acc"]]; cc = "0" if u["ks"] == 0 else vr(acc, 16)
        wr = vr(vW[u["i"] % NW], 4); xr = vr(vX + 4 * u["ks"], 4)
        A, B = (xr, wr) if u.get("swap") else (wr, xr)
        g.append(f"v_mfma_f32_32x32x16_bf16 {vr(acc,16)}, {A}, {B}, {cc}")
        if u["i"] + PD < len(U): emit_read(g, U[u["i"] + PD], lq, bd)
        return g
    def silu_ep(acc, tile_sreg, tile_add):
        f = [f"s_mov_b32 s{sT3}, {f32(-1.4426950408889634)}"]
        for h in range(2):
            for j in range(8): f.append(f"v_mul_f32 v{vE+j}, s{sT3}, v{acc+8*h+j}")
            for j in range(8): f.append(f"v_exp_f32 v{vE+j}, v{vE+j}")
            for j in range(8): f.append(f"v_add_f32 v{vE+j}, 1.0, v{vE+j}")
            for j in range(8): f.append(f"v_rcp_f32 v{vE+j}, v{vE+j}")
            for j in range(8): f.append(f"v_mul_f32 v{acc+8*h+j}, v{acc+8*h+j}, v{vE+j}")
        for j in range(8): f.append(f"v_cvt_pk_bf16_f32 v{vPk+j}, v{acc+2*j}, v{acc+2*j+1}")
        f += [f"s_mul_i32 s{sT}, s{sTT}, {112*1024}", f"s_add_u32 s{sT2}, s{tile_sreg}, {tile_add}", f"s_lshl_b32 s{sT2}, s{sT2}, 11",
              f"s_add_u32 s{sT}, s{sT}, s{sT2}", f"s_add_u32 s{sT}, s{sT}, {WS_H}",
              f"buffer_store_dwordx4 {vr(vPk,4)}, v{vL16}, s[32:35], s{sT} offen",
              f"buffer_store_dwordx4 {vr(vPk+4,4)}, v{vL16}, s[32:35], s{sT} offen offset:1024"]
        return f
    def qkv_ep():
        f = []
        acc = vAcc[2]
        f += [f"s_lshl_b32 s{sT}, s{sCg}, 18", f"s_lshl_b32 s{sT2}, s{sTT}, 10", f"s_add_u32 s{sT}, s{sT}, s{sT2}",
              f"s_add_u32 s{sT}, s{sT}, {WS_KV + 65536}",
              f"s_lshr_b32 s{sT3}, s{sCg}, 1", f"s_add_u32 s95, s{sOdd}, 18", f"s_lshl_b32 s{sT3}, s{sT3}, s95",
              f"s_add_u32 s{sT2}, s{sT2}, s{sT3}", f"s_mul_i32 s{sT3}, s{sOdd}, {WS_KV}", f"s_add_u32 s{sT2}, s{sT2}, s{sT3}",
              f"s_add_u32 s95, s{sOdd}, 16", f"s_lshl_b32 s95, 1, s95",
              f"s_cmp_lg_u32 s{sOdd}, 0", f"s_cselect_b32 s{sT3}, 1.0, {f32(QSCALE)}"]
        k = 0
        for t in range(2):
            acc = vAcc[t]
            for j in range(16): f.append(f"v_mul_f32 v{acc+j}, s{sT3}, v{acc+j}")
            pk = vPk if t == 0 else vE
            for j in range(8): f.append(f"v_cvt_pk_bf16_f32 v{pk+j}, v{acc+2*j}, v{acc+2*j+1}")
            f.append(f"buffer_store_dwordx4 {vr(pk,4)}, v{vL16}, s[32:35], s{sT2} offen")
            f.append(f"s_add_u32 s{sT2}, s{sT2}, s95")
            f.append(f"buffer_store_dwordx4 {vr(pk+4,4)}, v{vL16}, s[32:35], s{sT2} offen")
            f.append(f"s_add_u32 s{sT2}, s{sT2}, s95")
        acc = vAcc[2]
        for j in range(8): f.append(f"v_cvt_pk_bf16_f32 v{acc+j}, v{acc+2*j}, v{acc+2*j+1}")
        f.append(f"buffer_store_dwordx4 {vr(acc,4)}, v{vVO}, s[32:35], s{sT} offen")
        f.append(f"buffer_store_dwordx4 {vr(acc+4,4)}, v{vVO}, s[32:35], s{sT} offen offset:512")
        return f
    PD = 6
    Ue = units(False); Uo = units(True)
    NCOMMON = 96 + 64 - PD
    bd = set()
    pre = []
    for i in range(PD): emit_read(pre, Ue[i], lq, bd)
    for x in pre: c(x)
    SP.st(c, 1)
    if SP.on: c(lq.drain())
    for i in range(96):
        for x in group(Ue[i], Ue, lq, bd, PD): c(x)
        if SP.on and i % 24 == 23:
            SP.st(c, 2 + i // 24); c(lq.drain())
    c("s_nop 7")
    for x in qkv_ep(): c(x)
    SP.st(c, 6)
    if SP.on: c(lq.drain())
    for i in range(96, NCOMMON):
        for x in group(Ue[i], Ue, lq, bd, PD): c(x)
    c(f"s_cmp_lg_u32 s{sOdd}, 0")
    c(f"s_cbranch_scc1 L_{name}_odd")
    saved = (dict(S.win), lq.copy(), set(bd))
    ce = Asm()
    G = [group(Ue[i], Ue, lq, bd, PD) for i in range(NCOMMON, len(Ue))]
    n0 = 160 - NCOMMON
    fill = silu_ep(vAcc[0], sFA, 0) + silu_ep(vAcc[1], sFA, 1)
    spread(G, fill, n0 + 3, n0 + 46)
    spread(G, silu_ep(vAcc[2], sFB, 0), n0 + 46, n0 + 64)
    for g in G:
        for x in g: ce(x)
    SP.st(ce, 7)
    ce("s_nop 11")
    for x in silu_ep(vAcc[3], sFB, 1): ce(x)
    SP.st(ce, 8)
    if SP.on: ce("s_waitcnt vmcnt(0)")
    SP.st(ce, 9)
    SP.flush(ce, "s[32:35]", sWave, 4, sT)
    if stamps: stamp_end(ce, 0, "s[32:35]", sWave, vt=4)
    ce("s_endpgm")
    S.win, lq, bd = saved
    co = Asm()
    co.label(f"L_{name}_odd")
    G = [group(Uo[i], Uo, lq, bd, PD) for i in range(NCOMMON, len(Uo))]
    spread(G, silu_ep(vAcc[0], sFA, 0) + silu_ep(vAcc[1], sFA, 1), n0 + 3, n0 + 32)
    for g in G:
        for x in g: co(x)
    co(f"s_cmp_lg_u32 s{sCg}, 1")
    co(f"s_cbranch_scc1 L_{name}_nogate")
    cg = Asm()
    cg(f"v_lshrrev_b32 v{vT}, 5, v{vL}")
    cg(f"v_lshlrev_b32 v{vT}, 4, v{vT}")
    acc = vAcc[0]
    for s in range(PD):
        cg(f"buffer_load_dwordx4 {vr(vW[s%NW],4)}, v{vT}, s[40:43], 0 offen offset:{s*32}")
    for s in range(32):
        rem = min(PD - 1, 31 - s)
        cg(f"s_waitcnt vmcnt({rem})")
        cc = "0" if s == 0 else vr(acc, 16)
        cg(f"v_mfma_f32_32x32x16_bf16 {vr(acc,16)}, {vr(vW[s%NW],4)}, {vr(vX+4*s,4)}, {cc}")
        if s + PD < 32:
            cg(f"buffer_load_dwordx4 {vr(vW[(s+PD)%NW],4)}, v{vT}, s[40:43], 0 offen offset:{(s+PD)*32}")
    cg(f"""
    s_mov_b32 s{sT3}, {f32(-1.4426950408889634)}
    s_lshl_b32 s{sT}, s{sTT}, 7
    s_add_u32 s{sT}, s{sT}, {WS_G}
    v_lshlrev_b32 v{vT}, 2, v{vL}
    s_nop 8
    v_mul_f32 v{vE}, s{sT3}, v{acc}
    v_exp_f32 v{vE}, v{vE}
    s_nop 0
    v_add_f32 v{vE}, 1.0, v{vE}
    v_rcp_f32 v{vE}, v{vE}
    s_mov_b64 exec, 0xffffffff
    buffer_store_dword v{vE}, v{vT}, s[32:35], s{sT} offen
    s_mov_b64 exec, -1
    """)
    cn = Asm()
    cn.label(f"L_{name}_nogate")
    cn("s_nop 11")
    for x in silu_ep(vAcc[2], sFB, 0): cn(x)
    if stamps: stamp_end(cn, 0, "s[32:35]", sWave, vt=4)
    cn("s_endpgm")
    check(a.lines + c.lines + ce.lines, name + "_even")
    check(a.lines + c.lines + co.lines + cg.lines + cn.lines, name + "_odd_gate")
    check(a.lines + c.lines + co.lines + cn.lines, name + "_odd")
    check(a.lines + l.lines + le.lines, name + "_loader")
    check(a.lines + l.lines + lo.lines, name + "_loader_odd")
    nb = lambda L: sum(1 for x in L if "s_barrier" in x)
    print("barriers", nb(c.lines + ce.lines), nb(c.lines + co.lines), nb(l.lines + le.lines), nb(l.lines + lo.lines))
    return khead(name) + a.text() + l.text() + le.text() + lo.text() + c.text() + ce.text() + co.text() + cg.text() + cn.text() + kd(name, 256, 102)

if __name__ == "__main__":
    hdr = "; @launch kernel=ffa_kernel grid=(256,1,1) block=(512,1,1) lds=163840\n" + '.amdgcn_target "amdgcn-amd-amdhsa--gfx950"\n'
    open("k1.s", "w").write(hdr + gen_k1())
    open("k1s.s", "w").write(hdr + gen_k1(stamps=2))
```

```python
from asmlib import *

WS_Q = 0
WS_KV = 2 << 20
WS_O = 6 << 20
WS_H = 8 << 20
WS_W = 16 << 20
WS_G = 20 << 20
WS_SIZE = 32 << 20

def gen_k2(name="att_kernel", stamps=False, exp="", st2=False):
    a = Asm()
    nst = [0]
    def stamp():
        if stamps:
            a(f"s_memtime s[{40+2*nst[0]}:{41+2*nst[0]}]")
            a(f"s_memrealtime s[{50+2*nst[0]}:{51+2*nst[0]}]")
            a("s_waitcnt lgkmcnt(0)")
            nst[0] += 1
    vL16 = 1; vKA = 2; vVA = 3; vT = 4; vT2 = 5; vT3 = 6; vM = 7
    vQ = 8
    vK = [12, 16]
    vV = [[20, 24], [28, 32]]
    vP = 36
    vNM = 44
    vS = [60, 76]
    vO = 92
    NV = 108
    sWave = 12; sHead = 13; sQb = 14; sKV = 15; sT = 16; sT2 = 17; sVM = 18
    a(f"""
    s_cmp_ge_u32 s2, 256
    s_cbranch_scc1 L_{name}_end
    """)
    stamp()
    if st2: stamp_begin(a)
    a(f"""
    s_load_dwordx2 s[4:5], s[0:1], 72
    v_lshrrev_b32 v{vT}, 6, v0
    v_and_b32 v{vL16}, 63, v0
    v_readfirstlane_b32 s{sWave}, v{vT}
    v_lshlrev_b32 v{vL16}, 4, v{vL16}
    s_and_b32 s{sHead}, s2, 7
    s_lshl_b32 s{sHead}, s{sHead}, 2
    s_lshr_b32 s{sT}, s2, 3
    s_and_b32 s{sT2}, s{sT}, 3
    s_add_u32 s{sHead}, s{sHead}, s{sT2}
    s_lshr_b32 s{sQb}, s{sT}, 2
    s_lshl_b32 s{sQb}, s{sQb}, 3
    s_add_u32 s{sQb}, s{sQb}, s{sWave}
    s_lshl_b32 s{sKV}, s{sHead}, 17
    s_add_u32 s{sKV}, s{sKV}, {WS_KV}
    s_lshl_b32 s{sT}, s{sHead}, 16
    s_lshl_b32 s{sT2}, s{sQb}, 10
    s_add_u32 s{sT}, s{sT}, s{sT2}
    s_mov_b32 s10, {WS_SIZE}
    s_mov_b32 s11, 0x00020000
    s_waitcnt lgkmcnt(0)
    s_mov_b32 s8, s4
    s_mov_b32 s9, s5
    buffer_load_dwordx4 {vr(vQ,4)}, v{vL16}, s[8:11], s{sT} offen
    """)
    a(f"""
    s_lshl_b32 s{sT}, s{sWave}, 10
    s_mov_b32 m0, s{sT}
    s_add_u32 s{sT2}, s{sKV}, s{sT}
    buffer_load_dwordx4 v{vL16}, s[8:11], s{sT2} offen lds
    s_add_u32 s{sT}, s{sT}, 65536
    s_mov_b32 m0, s{sT}
    s_add_u32 s{sT2}, s{sKV}, s{sT}
    buffer_load_dwordx4 v{vL16}, s[8:11], s{sT2} offen lds
    """)
    for (base, n) in ((8192, 3), (32768, 4)):
        a(f"s_mul_i32 s{sT}, s{sWave}, {n*1024}")
        a(f"s_add_u32 s{sT}, s{sT}, {base}")
        for kv in range(2):
            if kv: a(f"s_add_u32 s{sT}, s{sT}, 65536")
            a(f"s_mov_b32 m0, s{sT}")
            a(f"s_add_u32 s{sT2}, s{sKV}, s{sT}")
            for j in range(n):
                a(f"buffer_load_dwordx4 v{vL16}, s[8:11], s{sT2} offen offset:{j*1024} lds")
    a(f"""
    v_mov_b32 v{vKA}, v{vL16}
    v_and_b32 v{vT}, 15, v0
    v_lshlrev_b32 v{vT}, 4, v{vT}
    v_and_b32 v{vT2}, 32, v0
    v_lshlrev_b32 v{vT2}, 3, v{vT2}
    v_add_u32 v{vVA}, v{vT}, v{vT2}
    v_add_u32 v{vVA}, 0x10000, v{vVA}
    s_mov_b32 s{sVM}, 0x0000ffff
    s_mov_b32 s{sVM+1}, 0x0000ffff
    s_mov_b32 s{sT}, 0x3f803f80
    """)
    if "ones" not in exp:
        a(f"v_and_b32 v{vT}, 27, v0")
        a(f"v_cmp_eq_u32 vcc, 16, v{vT}")
        a(f"v_mov_b32 v{vT2}, s{sT}")
        a(f"s_nop 0")
        a(f"v_cndmask_b32 v{vT}, 0, v{vT2}, vcc")
    else:
        a(f"v_mov_b32 v{vT}, s{sT}")
    for b in range(2):
        for g in range(2):
            for j in range(4):
                a(f"v_mov_b32 v{vV[b][g]+j}, v{vT}")
    def readK(i):
        if "nolds" in exp and i > 1: return
        a(f"ds_read_b128 {vr(vK[i%2],4)}, v{vKA} offset:{i*1024}")
    def readV(i):
        if "nolds" in exp and i > 1: return
        if "noexec" not in exp: a(f"s_mov_b64 exec, s[{sVM}:{sVM+1}]")
        a(f"ds_read_b128 {vr(vV[i%2][0],4)}, v{vVA} offset:{i*1024}")
        a(f"ds_read_b128 {vr(vV[i%2][1],4)}, v{vVA} offset:{i*1024+512}")
        if "noexec" not in exp: a(f"s_mov_b64 exec, -1")
    def mS(i, c):
        a(f"v_mfma_f32_32x32x16_bf16 {vr(vS[i%2],16)}, {vr(vK[i%2],4)}, {vr(vQ,4)}, {c}")
    def mPV(i, g, first=False):
        c = "0" if first else vr(vO, 16)
        if "nopv" in exp and 0 < i < 63: return
        a(f"v_mfma_f32_32x32x16_bf16 {vr(vO,16)}, {vr(vV[i%2][g],4)}, {vr(vP+4*g,4)}, {c}")
    a("s_waitcnt vmcnt(14)")
    a("s_barrier")
    stamp()
    readK(0); readK(1); readV(0)
    a("s_waitcnt lgkmcnt(3)")
    mS(0, "0")
    a("s_nop 11")
    S0 = vS[0]
    a(f"v_max3_f32 v{vM}, v{S0}, v{S0+1}, v{S0+2}")
    a(f"v_max3_f32 v{vT}, v{S0+3}, v{S0+4}, v{S0+5}")
    a(f"v_max3_f32 v{vM}, v{vM}, v{S0+6}, v{S0+7}")
    a(f"v_max3_f32 v{vT}, v{vT}, v{S0+8}, v{S0+9}")
    a(f"v_max3_f32 v{vM}, v{vM}, v{S0+10}, v{S0+11}")
    a(f"v_max3_f32 v{vT}, v{vT}, v{S0+12}, v{S0+13}")
    a(f"v_max3_f32 v{vM}, v{vM}, v{S0+14}, v{S0+15}")
    a(f"v_max_f32 v{vM}, v{vM}, v{vT}")
    a(f"v_mov_b32 v{vT}, v{vM}")
    a("s_nop 1")
    a(f"v_permlane32_swap_b32 v{vM}, v{vT}")
    a("s_nop 1")
    a(f"v_max_f32 v{vM}, v{vM}, v{vT}")
    for j in range(16):
        a(f"v_sub_f32 v{vNM+j}, 0, v{vM}")
    a("s_nop 1")
    mS(0, vr(vNM, 16))
    NT = 64
    for i in range(NT):
        S = vS[i % 2]
        E = lambda j: a(f"v_exp_f32 v{S+j}, v{S+j}") if "noexp" not in exp else a(f"v_mov_b32 v{S+j}, v{S+j}")
        C = lambda j: a(f"v_cvt_pk_bf16_f32 v{vP+j}, v{S+2*j}, v{S+2*j+1}")
        if i == 6:
            a("s_waitcnt vmcnt(8)")
            if "nobar" not in exp: a("s_barrier")
        if i == 30:
            a("s_waitcnt vmcnt(0)")
            if "nobar" not in exp: a("s_barrier")
        if "prio" in exp:
            pr = {0: 3, 30: 2, 50: 1, 60: 0}
            if i in pr: a(f"s_setprio {pr[i]}")
        if "prib" in exp:
            pr = {0: 3, 3: 2, 5: 1, 6: 3, 20: 2, 27: 1, 29: 0, 30: 3, 48: 2, 58: 1, 62: 0}
            if i in pr: a(f"s_setprio {pr[i]}")
        if "ord2" in exp and i > 0:
            Sp = vS[(i - 1) % 2]
            a(f"v_cvt_pk_bf16_f32 v{vP+7}, v{Sp+14}, v{Sp+15}")
        if i + 1 < NT:
            if i > 0:
                a("s_waitcnt lgkmcnt(2)")
            else:
                a("s_waitcnt lgkmcnt(2)")
            mS(i + 1, vr(vNM, 16))
        if i + 2 < NT:
            readK(i + 2)
        if i == 0:
            a("s_nop 9")
        if "ord2" in exp:
            Sp = vS[(i + 1) % 2]
            E(0); E(1); E(2); E(3); C(0); E(4)
        else:
            E(0); E(1); E(2); C(0); E(3); E(4); C(1)
        if i > 0:
            if i == NT - 1: a("s_waitcnt lgkmcnt(2)")
            mPV(i - 1, 1)
        if i + 1 < NT:
            readV(i + 1)
        if "ord2" in exp:
            E(5); C(1); E(6); E(7); C(2); E(8); E(9); C(3); E(10); a("s_nop 0")
        else:
            E(5); E(6); C(2); E(7); E(8); C(3); E(9); E(10)
        n_after = 1 + (1 if i + 2 < NT else 0) + (2 if i + 1 < NT else 0)
        a(f"s_waitcnt lgkmcnt({n_after})")
        mPV(i, 0, first=(i == 0))
        if "ord2" in exp:
            E(11); E(12); C(4); E(13); C(5); E(14); E(15); C(6)
            if i == NT - 1: C(7)
        else:
            E(11); C(4); E(12); C(5); E(13); E(14); C(6); E(15)
            a("s_nop 0")
            C(7)
    a("s_waitcnt lgkmcnt(0)")
    a("s_nop 0")
    mPV(NT - 1, 1)
    a("s_nop 11")
    stamp()
    a(f"""
    v_add_f32 v{vT}, abs(v{vO}), abs(v{vO+1})
    v_add_f32 v{vT2}, abs(v{vO+2}), abs(v{vO+3})
    v_add_f32 v{vT}, v{vT}, abs(v{vO+4})
    v_add_f32 v{vT2}, v{vT2}, abs(v{vO+5})
    v_add_f32 v{vT}, v{vT}, abs(v{vO+6})
    v_add_f32 v{vT2}, v{vT2}, abs(v{vO+7})
    v_add_f32 v{vT}, v{vT}, v{vT2}
    s_mov_b32 s{sT}, 0x7f000000
    s_mov_b32 s{sT2}, 0x53800000
    v_cmp_nle_f32 vcc, v{vT}, s{sT}
    v_cmp_nle_f32 s[20:21], v{vO+8}, s{sT2}
    s_nop 1
    s_or_b64 vcc, vcc, s[20:21]
    s_cbranch_vccnz L_{name}_slow
    """)
    a.label(f"L_{name}_fin")
    a(f"""
    v_rcp_f32 v{vT}, v{vO+8}
    s_lshl_b32 s{sT}, s{sQb}, 15
    s_lshl_b32 s{sT2}, s{sHead}, 10
    s_add_u32 s{sT}, s{sT}, s{sT2}
    s_add_u32 s{sT}, s{sT}, {WS_O}
    """)
    for j in range(8):
        a(f"v_mul_f32 v{vO+j}, v{vO+j}, v{vT}")
    for j in range(4):
        a(f"v_cvt_pk_bf16_f32 v{vP+j}, v{vO+2*j}, v{vO+2*j+1}")
    a(f"buffer_store_dwordx4 {vr(vP,4)}, v{vL16}, s[8:11], s{sT} offen")
    if stamps:
        a("s_waitcnt vmcnt(0)")
        stamp()
        a(f"s_lshl_b32 s{sT}, s2, 3")
        a(f"s_add_u32 s{sT}, s{sT}, s{sWave}")
        a(f"s_lshl_b32 s{sT}, s{sT}, 5")
        a(f"s_add_u32 s{sT}, s{sT}, {24<<20}")
        for j in range(4):
            a(f"v_mov_b32 v{vP+j}, s{40+2*j}")
        a(f"v_mov_b32 v{vT}, 0")
        a(f"s_mov_b64 exec, 1")
        a(f"buffer_store_dwordx4 {vr(vP,4)}, v{vT}, s[8:11], s{sT} offen")
        for j in range(4):
            a(f"v_mov_b32 v{vP+4+j}, s{50+2*j}")
        a(f"buffer_store_dwordx4 {vr(vP+4,4)}, v{vT}, s[8:11], s{sT} offen offset:16")
    if st2: stamp_end(a, 1, "s[8:11]", sWave, vt=12)
    a.label(f"L_{name}_end")
    a("s_endpgm")
    fast = list(a.lines)
    b = Asm()
    b.label(f"L_{name}_slow")
    S = vS[0]
    b(f"s_mov_b32 s{sT}, 0xff800000")
    b(f"v_mov_b32 v{vM}, s{sT}")
    for j in range(16):
        b(f"v_mov_b32 v{vO+j}, 0")
    b(f"s_mov_b32 s22, 0")
    b.label(f"L_{name}_slowloop")
    b(f"""
    ds_read_b128 {vr(vK[0],4)}, v{vKA}
    s_mov_b64 exec, s[{sVM}:{sVM+1}]
    ds_read_b128 {vr(vV[0][0],4)}, v{vVA}
    ds_read_b128 {vr(vV[0][1],4)}, v{vVA} offset:512
    s_mov_b64 exec, -1
    s_waitcnt lgkmcnt(0)
    v_mfma_f32_32x32x16_bf16 {vr(S,16)}, {vr(vK[0],4)}, {vr(vQ,4)}, 0
    v_add_u32 v{vKA}, 1024, v{vKA}
    v_add_u32 v{vVA}, 1024, v{vVA}
    s_nop 9
    v_max3_f32 v{vT}, v{S}, v{S+1}, v{S+2}
    v_max3_f32 v{vT}, v{vT}, v{S+3}, v{S+4}
    v_max3_f32 v{vT}, v{vT}, v{S+5}, v{S+6}
    v_max3_f32 v{vT}, v{vT}, v{S+7}, v{S+8}
    v_max3_f32 v{vT}, v{vT}, v{S+9}, v{S+10}
    v_max3_f32 v{vT}, v{vT}, v{S+11}, v{S+12}
    v_max3_f32 v{vT}, v{vT}, v{S+13}, v{S+14}
    v_max_f32 v{vT}, v{vT}, v{S+15}
    v_mov_b32 v{vT2}, v{vT}
    s_nop 1
    v_permlane32_swap_b32 v{vT}, v{vT2}
    s_nop 1
    v_max3_f32 v{vT}, v{vT}, v{vT2}, v{vM}
    v_sub_f32 v{vT2}, v{vM}, v{vT}
    v_exp_f32 v{vT2}, v{vT2}
    v_mov_b32 v{vM}, v{vT}
    """)
    for j in range(16):
        b(f"v_mul_f32 v{vO+j}, v{vO+j}, v{vT2}")
    for j in range(16):
        b(f"v_sub_f32 v{S+j}, v{S+j}, v{vM}")
    for j in range(16):
        b(f"v_exp_f32 v{S+j}, v{S+j}")
    b("s_nop 0")
    for j in range(8):
        b(f"v_cvt_pk_bf16_f32 v{vP+j}, v{S+2*j}, v{S+2*j+1}")
    b(f"""
    s_nop 1
    v_mfma_f32_32x32x16_bf16 {vr(vO,16)}, {vr(vV[0][0],4)}, {vr(vP,4)}, {vr(vO,16)}
    v_mfma_f32_32x32x16_bf16 {vr(vO,16)}, {vr(vV[0][1],4)}, {vr(vP+4,4)}, {vr(vO,16)}
    s_add_u32 s22, s22, 1
    s_cmp_lt_u32 s22, 64
    s_nop 11
    s_cbranch_scc1 L_{name}_slowloop
    s_branch L_{name}_fin
    """)
    check(fast, name, verbose=('nolds' not in exp))
    check(b.lines + b.lines, name + "_slow")
    txt = khead(name) + a.text() + b.text() + kd(name, NV, 102)
    return txt

if __name__ == "__main__":
    hdr = "; @launch kernel=att_kernel grid=(256,1,1) block=(512,1,1) lds=131072\n" + '.amdgcn_target "amdgcn-amd-amdhsa--gfx950"\n'
    open("k2.s", "w").write(hdr + gen_k2())
    open("k2s.s", "w").write(hdr + gen_k2(stamps=True))
    for e in ("nobar", "nobar_prio", "prib", "nobar_prio_nolds"):
        open(f"k2s_{e}.s", "w").write(hdr + gen_k2(stamps=True, exp=e))
```

```python
from asmlib import *
from k1 import f32, QSCALE
from k1b import spread

WS_Q = 0; WS_KV = 2 << 20; WS_O = 6 << 20; WS_H = 8 << 20; WS_W = 16 << 20; WS_G = 20 << 20
WS_F = 24 << 20
FQ = WS_F
FH = WS_F + 0x4000
FW = WS_F + 0x8000
FG = WS_F + 0xC000
FO = WS_F + 0x10000
WS_SIZE = 32 << 20
SC = " sc1"
SPIN_MAX = 20000

def gen(name, stamps=0, exp=""):
    sWave = 12; sRb = 13; sCg = 14; sT = 15; sT2 = 16; sT3 = 17; sTT = 18; sFA = 19; sFB = 50; sOdd = 51; sG = 59; sT4 = 95
    sTok = 72
    DBG = "s[64:67]"; OUT = "s[68:71]"; WS = "s[32:35]"
    vL = 2
    uid = [0]
    SP = Stamper(stamps >= 2, base=74, slot=0)
    if stamps == 3: SP.ins = "s_memrealtime"
    FS = "fs" in exp
    a = Asm()
    a("""
    s_cmp_ge_u32 s2, 256
    s_cbranch_scc1 L_end
    """)
    SP.st(a, 0)
    if SP.on: a("s_memrealtime s[60:61]\ns_waitcnt lgkmcnt(0)\ns_mov_b32 s101, s60")
    a(f"""
    s_load_dwordx4 s[4:7], s[0:1], 0
    s_load_dwordx2 s[8:9], s[0:1], 16
    s_load_dwordx4 s[44:47], s[0:1], 32
    s_load_dwordx4 s[52:55], s[0:1], 48
    s_load_dwordx4 s[60:63], s[0:1], 64
    v_lshrrev_b32 v1, 6, v0
    v_and_b32 v{vL}, 63, v0
    v_readfirstlane_b32 s{sWave}, v1
    s_and_b32 s{sT}, s2, 7
    s_lshr_b32 s{sT2}, s2, 3
    s_and_b32 s{sRb}, s{sT}, 1
    s_lshl_b32 s{sRb}, s{sRb}, 3
    s_and_b32 s{sT3}, s{sT2}, 7
    s_add_u32 s{sRb}, s{sRb}, s{sT3}
    s_lshr_b32 s{sCg}, s{sT}, 1
    s_lshl_b32 s{sCg}, s{sCg}, 2
    s_lshr_b32 s{sT3}, s{sT2}, 3
    s_add_u32 s{sCg}, s{sCg}, s{sT3}
    s_and_b32 s{sOdd}, s{sCg}, 1
    s_lshr_b32 s{sG}, s{sCg}, 1
    s_lshr_b32 s{sT}, s{sCg}, 2
    s_mul_i32 s{sT}, s{sT}, 14
    s_and_b32 s{sT2}, s{sCg}, 3
    s_lshl_b32 s{sT2}, s{sT2}, 3
    s_lshr_b32 s{sFA}, 0x0c080400, s{sT2}
    s_and_b32 s{sFA}, s{sFA}, 0xff
    s_add_u32 s{sFA}, s{sFA}, s{sT}
    s_lshr_b32 s{sFB}, 0x070a0602, s{sT2}
    s_and_b32 s{sFB}, s{sFB}, 0xff
    s_add_u32 s{sFB}, s{sFB}, s{sT}
    s_mov_b32 s22, {2048*1024}
    s_mov_b32 s23, 0x00020000
    s_mov_b32 s26, {512*3072}
    s_mov_b32 s27, 0x00020000
    s_mov_b32 s30, {512*3584}
    s_mov_b32 s31, 0x00020000
    s_mov_b32 s34, {WS_SIZE}
    s_mov_b32 s35, 0x00020000
    s_mov_b32 s39, 0x00020000
    s_mov_b32 s42, 1024
    s_mov_b32 s43, 0x00020000
    s_mov_b32 s66, 256
    s_mov_b32 s67, 0x00020000
    s_mov_b32 s70, {2048*1024}
    s_mov_b32 s71, 0x00020000
    s_cmp_lt_u32 s{sWave}, 4
    s_cbranch_scc1 L_comp
    """)
    srdsetup = """
    s_waitcnt lgkmcnt(0)
    s_mov_b32 s20, s4
    s_mov_b32 s21, s5
    s_mov_b32 s24, s6
    s_mov_b32 s25, s7
    s_mov_b32 s28, s44
    s_mov_b32 s29, s45
    s_mov_b32 s32, s62
    s_mov_b32 s33, s63
    s_mov_b32 s40, s52
    s_mov_b32 s41, s53
    s_mov_b32 s64, s60
    s_mov_b32 s65, s61
    s_mov_b32 s68, s54
    s_mov_b32 s69, s55
    """
    def get_token(L, vt):
        uid[0] += 1; u = uid[0]
        L(f"v_mov_b32 v{vt+2}, 0")
        L(f"s_mov_b32 s{sT4}, 0")
        L.label(f"L_tok{u}")
        L(f"""
        buffer_load_dwordx2 v[{vt}:{vt+1}], v{vt+2}, {DBG}, 0 offen sc1
        s_add_u32 s{sT4}, s{sT4}, 1
        s_waitcnt vmcnt(0)
        v_readfirstlane_b32 s{sTok}, v{vt}
        v_readfirstlane_b32 s{sTok+1}, v{vt+1}
        s_cmp_gt_u32 s{sT4}, {SPIN_MAX}
        s_cbranch_scc1 L_tokd{u}
        s_cmp_eq_u32 s{sTok}, 0
        s_cbranch_scc1 L_tok{u}
        """)
        L.label(f"L_tokd{u}")
    def token_issue(L, vt):
        L(f"v_mov_b32 v{vt+2}, 0")
        L(f"buffer_load_dwordx2 v[{vt}:{vt+1}], v{vt+2}, {DBG}, 0 offen sc1")
    def token_finish(L, vt, wait):
        uid[0] += 1; lab = f"L_tokok{uid[0]}"
        L(wait)
        L(f"v_readfirstlane_b32 s{sTok}, v{vt}")
        L(f"v_readfirstlane_b32 s{sTok+1}, v{vt+1}")
        L(f"s_cmp_lg_u32 s{sTok}, 0")
        L(f"s_cbranch_scc1 {lab}")
        get_token(L, vt)
        L.label(lab)
    def flag_store(vtok, voff0, soff):
        return ["s_mov_b64 exec, 1",
                f"buffer_store_dwordx2 v[{vtok}:{vtok+1}], v{voff0}, {WS}, s{soff} offen sc1",
                "s_mov_b64 exec, -1"]
    def poll_cmp(L, vd, nd):
        L(f"v_cmp_ne_u64 vcc, s[{sTok}:{sTok+1}], v[{vd}:{vd+1}]")
        if nd == 4:
            L(f"v_cmp_ne_u64 s[10:11], s[{sTok}:{sTok+1}], v[{vd+2}:{vd+3}]")
            L("s_nop 1")
            L("s_or_b64 vcc, vcc, s[10:11]")
        else:
            L("s_nop 1")
    def poll(L, vd, nd, voff, soff, mask=None, sleep=1, dbg=False):
        uid[0] += 1; u = uid[0]
        L(f"s_mov_b32 s{sT4}, 0")
        if mask: L(f"s_mov_b64 exec, {mask}")
        if dbg: SP.st(L, 4)
        L.label(f"L_poll{u}")
        if dbg: SP.st(L, 7)
        L(f"buffer_load_dwordx{nd} v[{vd}:{vd+nd-1}], v{voff}, {WS}, s{soff} offen sc1")
        L(f"s_add_u32 s{sT4}, s{sT4}, 1")
        L("s_waitcnt vmcnt(0)")
        if dbg:
            L(f"s_cmp_lg_u32 s{sT4}, 1")
            L(f"s_cbranch_scc1 L_pdb{u}")
            SP.st(L, 5)
            L.label(f"L_pdb{u}")
            L("s_waitcnt lgkmcnt(0)")
            L(f"s_mul_i32 s{SP.base+12}, s{sT4}, 100")
            L(f"s_add_u32 s{SP.base+12}, s{SP.base+12}, s101")
        poll_cmp(L, vd, nd)
        L(f"s_cmp_gt_u32 s{sT4}, {SPIN_MAX}")
        L(f"s_cbranch_scc1 L_polld{u}")
        L(f"s_cbranch_vccz L_polld{u}")
        if sleep: L(f"s_sleep {sleep}")
        L(f"s_branch L_poll{u}")
        L.label(f"L_polld{u}")
        if mask: L("s_mov_b64 exec, -1")

    NSLOT = 5; SLOTB = 32768
    slot = lambda st: (st % NSLOT) * SLOTB
    XO, AO, BO = 0, 16384, 24576
    NSTG = {False: 12, True: 11}
    NE = 12
    KE, VE, QE = 65536, 65536 + NE * 1024, 65536 + 2 * NE * 1024
    KL, VL = 0, 98304
    sHead = 56; sQb = 57; sKV = 58; sNb = 48
    attdec = f"""
    s_and_b32 s{sHead}, s2, 7
    s_lshl_b32 s{sHead}, s{sHead}, 2
    s_lshr_b32 s{sT}, s2, 3
    s_and_b32 s{sT2}, s{sT}, 3
    s_add_u32 s{sHead}, s{sHead}, s{sT2}
    s_lshr_b32 s{sNb}, s{sT}, 2
    s_lshl_b32 s{sQb}, s{sNb}, 3
    s_add_u32 s{sQb}, s{sQb}, s{sWave}
    s_lshl_b32 s{sKV}, s{sHead}, 17
    s_add_u32 s{sKV}, s{sKV}, {WS_KV}
    """
    l = Asm()
    sJ = 52; sM = 53; sSo = 54; sXb = 55; sAb = 56; sBb = 57; sFb = 58
    sJ4k, sJ2k, sJ1k, sJ8k = 96, 97, 98, 99
    vXe = 4; vXo = 5; vQk = 6; vVs = 7; vFp = 8; vFs = 9; vR = 10
    l(f"""
    v_lshrrev_b32 v{vR}, 3, v{vL}
    v_and_b32 v{vR+1}, 7, v{vL}
    v_lshrrev_b32 v{vR+2}, 4, v{vL}
    v_xor_b32 v{vR+3}, v{vR+1}, v{vR+2}
    v_lshlrev_b32 v{vR+3}, 4, v{vR+3}
    v_lshl_add_u32 v{vXe}, v{vR}, 10, v{vR+3}
    v_xor_b32 v{vXo}, 64, v{vXe}
    v_and_b32 v{vR+2}, 1, v{vR+2}
    v_lshlrev_b32 v{vR+2}, 2, v{vR+2}
    v_xor_b32 v{vR+3}, v{vR+1}, v{vR+2}
    v_lshlrev_b32 v{vR+3}, 4, v{vR+3}
    v_mul_u32_u24 v{vQk}, 3072, v{vR}
    v_add_u32 v{vQk}, v{vQk}, v{vR+3}
    v_mul_u32_u24 v{vFp}, 3584, v{vR}
    v_add_u32 v{vFp}, v{vFp}, v{vR+3}
    v_lshrrev_b32 v{vR}, 2, v{vL}
    v_and_b32 v{vR+1}, 3, v{vL}
    v_lshlrev_b32 v{vR+1}, 4, v{vR+1}
    v_mul_u32_u24 v{vVs}, 3072, v{vR}
    v_add_u32 v{vVs}, v{vVs}, v{vR+1}
    v_mul_u32_u24 v{vFs}, 3584, v{vR}
    v_add_u32 v{vFs}, v{vFs}, v{vR+1}
    s_sub_u32 s{sBb}, s{sWave}, 4
    s_lshl_b32 s{sJ4k}, s{sBb}, 12
    s_lshl_b32 s{sJ2k}, s{sBb}, 11
    s_lshl_b32 s{sJ1k}, s{sBb}, 10
    s_lshl_b32 s{sJ8k}, s{sBb}, 13
    s_lshl_b32 s{sFb}, s{sRb}, 17
    s_lshl_b32 s{sT}, s{sBb}, 15
    s_add_u32 s{sFb}, s{sFb}, s{sT}
    s_lshl_b32 s{sAb}, s{sG}, 7
    s_mul_i32 s{sT}, s{sBb}, {16*3072}
    s_add_u32 s{sAb}, s{sAb}, s{sT}
    s_lshl_b32 s{sT2}, s{sOdd}, 10
    s_add_u32 s{sAb}, s{sAb}, s{sT2}
    s_lshl_b32 s{sBb}, s{sCg}, 6
    s_add_u32 s{sBb}, s{sBb}, 2048
    s_add_u32 s{sBb}, s{sBb}, s{sT}
    """)
    l(srdsetup)
    l(f"""
    s_sub_u32 s{sJ}, s{sWave}, 4
    s_mov_b32 s{sXb}, s{sFb}
    """)
    def dma(L, vo, srd, m0base, m0j, src_sreg, src_add, sc=""):
        L(f"s_add_u32 s{sM}, s{m0j}, {m0base}")
        L(f"s_mov_b32 m0, s{sM}")
        L(f"s_add_u32 s{sSo}, s{src_sreg}, {src_add}")
        L(f"buffer_load_dwordx4 v{vo}, {srd}, s{sSo} offen{sc} lds")
    def stage_dma(L, st, odd):
        n = 0
        if st < 8:
            for i in range(4):
                dma(L, vXe if i % 2 == 0 else vXo, "s[20:23]", slot(st) + XO + i * 1024, sJ4k, sXb, i * 8192 + st * 128); n += 1
            for i in range(2):
                dma(L, vQk, "s[24:27]", slot(st) + AO + i * 1024, sJ2k, sAb, (st * 64 + i * 8) * 3072); n += 1
            dma(L, vVs, "s[24:27]", slot(st) + BO, sJ1k, sBb, st * 64 * 3072); n += 1
        elif st < 10 or not odd:
            sF = sFA if st < 10 else sFB
            L(f"s_lshl_b32 s{sFb}, s{sF}, 6")
            L(f"s_mul_i32 s{sT}, s{sJ}, {64*3584}")
            L(f"s_add_u32 s{sFb}, s{sFb}, s{sT}")
            for i in range(8):
                dma(L, vFp, "s[28:31]", slot(st) + i * 1024, sJ8k, sFb, ((st % 2) * 256 + i * 8) * 3584); n += 1
        else:
            L(f"s_lshl_b32 s{sFb}, s{sFB}, 6")
            L(f"s_mul_i32 s{sT}, s{sJ}, {128*3584}")
            L(f"s_add_u32 s{sFb}, s{sFb}, s{sT}")
            for i in range(8):
                dma(L, vFs, "s[28:31]", slot(st) + i * 1024, sJ8k, sFb, i * 16 * 3584); n += 1
        return n
    RB = slot(11)
    sBand = 100
    vRo = 16; vRa = 17; vD = 20; vTk = 52
    def relayout_issue(lo, vqo):
        lo(f"""
        s_lshl_b32 s{sBand}, s{sRb}, 3
        s_add_u32 s{sBand}, s{sBand}, s{sG}
        v_lshrrev_b32 v{vR}, 4, v{vL}
        v_lshlrev_b32 v{vR}, 10, v{vR}
        v_and_b32 v{vR+1}, 15, v{vL}
        v_lshl_add_u32 v{vRo}, v{vR+1}, 4, v{vR}
        v_lshrrev_b32 v{vR}, 5, v{vL}
        v_lshlrev_b32 v{vR}, 10, v{vR}
        v_bfe_u32 v{vR+1}, v{vL}, 2, 2
        v_lshl_add_u32 v{vR}, v{vR+1}, 8, v{vR}
        v_bfe_u32 v{vR+1}, v{vL}, 4, 1
        v_lshl_add_u32 v{vR}, v{vR+1}, 5, v{vR}
        v_and_b32 v{vR+1}, 3, v{vL}
        v_lshl_add_u32 v{vRa}, v{vR+1}, 3, v{vR}
        s_add_u32 s{sT}, s{sJ4k}, {RB}
        v_add_u32 v{vRa}, s{sT}, v{vRa}
        s_cmp_lt_u32 s{sBand}, 32
        s_cselect_b32 s36, s8, s46
        s_cselect_b32 s37, s9, s47
        s_mov_b32 s38, {1792*1024}
        s_cselect_b32 s38, {512*1024}, s38
        s_cselect_b32 s{sT}, 0, 32
        s_sub_u32 s{sT}, s{sBand}, s{sT}
        s_lshl_b32 s{sFb}, s{sT}, 14
        s_lshl_b32 s{sT}, s{sJ}, 8
        s_add_u32 s{sFb}, s{sFb}, s{sT}
        """)
        for i in range(4):
            dma(lo, vRo, "s[36:39]", RB + i * 1024, sJ4k, sFb, i * 4096); vqo.issue("band")
        lo(f"""
        s_mov_b32 s4, s46
        s_mov_b32 s5, s47
        s_mov_b32 s6, {1792*1024}
        s_mov_b32 s7, 0x00020000
        s_add_u32 s{sT}, s{sBand}, 96
        s_lshl_b32 s{sFb}, s{sT}, 14
        s_lshl_b32 s{sT}, s{sJ}, 8
        s_add_u32 s{sFb}, s{sFb}, s{sT}
        """)
        for i in range(4):
            dma(lo, vRo, "s[4:7]", RB + 16384 + i * 1024, sJ4k, sFb, i * 4096); vqo.issue("band")
    vqc = Q("vmcnt", 63)
    for st in range(2):
        for _ in range(stage_dma(l, st, False)): vqc.issue(st)
    l(f"""
    s_cmp_lg_u32 s2, 0
    s_cbranch_scc1 L_notok
    s_cmp_lg_u32 s{sWave}, 4
    s_cbranch_scc1 L_notok
    s_memrealtime s[{sTok}:{sTok+1}]
    v_mov_b32 v{vTk+2}, 0
    s_waitcnt lgkmcnt(0)
    s_or_b32 s{sTok}, s{sTok}, 1
    v_mov_b32 v{vTk}, s{sTok}
    v_mov_b32 v{vTk+1}, s{sTok+1}
    s_mov_b64 exec, 1
    buffer_store_dwordx2 v[{vTk}:{vTk+1}], v{vTk+2}, {DBG}, 0 offen sc1
    s_mov_b64 exec, -1
    s_waitcnt vmcnt(0)
    """)
    l.label("L_notok")
    def loader_seq(L, odd, vq, first, last):
        nst = NSTG[odd]
        for st in range(first, last + 1):
            L(vq.need({st}))
            if FS and "fp" not in exp and st in (0, 2, 4, 7): SP.st(L, {0: 4, 2: 5, 4: 6, 7: 7}[st])
            L("s_barrier")
            for nx in ((2, 3) if st == 0 else (st + 3,)):
                if nx < nst:
                    for _ in range(stage_dma(L, nx, odd)): vq.issue(nx)
            if st == 5:
                token_issue(L, vTk); vq.issue("tok")
            if odd and st == 8: relayout_issue(L, vq)
    loader_seq(l, False, vqc, 0, 6)
    l(f"s_cmp_lg_u32 s{sOdd}, 0")
    l("s_cbranch_scc1 L_lodd")
    def loader_tail(L, odd):
        vq = vqc.copy()
        loader_seq(L, odd, vq, 7, NSTG[odd] - 1)
        SP.st(L, 1)
        token_finish(L, vTk, vq.need({"tok"}))
        L(f"v_lshlrev_b32 v{vR}, 4, v{vL}")
        L(attdec)
        L(f"s_lshr_b32 s{sT}, s{sHead}, 2")
        L(f"s_lshl_b32 s{sT}, s{sT}, 10")
        L(f"s_add_u32 s{sT3}, s{sT}, {FQ}")
        if odd:
            L(vq.drain())
            for b in range(2):
                for n in range(4):
                    L(f"ds_read_b64_tr_b16 {vr(vD+16*b+4*n,2)}, v{vRa} offset:{b*16384+n*64}")
                    L(f"ds_read_b64_tr_b16 {vr(vD+16*b+4*n+2,2)}, v{vRa} offset:{b*16384+n*64+2048}")
                if b == 0: L("s_waitcnt lgkmcnt(0)")
            L(f"""
            s_mul_i32 s{sT}, s{sJ}, {4*144*1024}
            s_lshl_b32 s{sT2}, s{sBand}, 10
            s_add_u32 s{sT}, s{sT}, s{sT2}
            s_add_u32 s{sT}, s{sT}, {WS_W}
            s_add_u32 s{sT2}, s{sT}, {128*1024}
            s_waitcnt lgkmcnt(0)
            """)
            for n in range(4):
                L(f"buffer_store_dwordx4 {vr(vD+4*n,4)}, v{vR}, {WS}, s{sT} offen{SC}")
                if n < 3: L(f"s_add_u32 s{sT}, s{sT}, {144*1024}")
            L(f"s_cmp_ge_u32 s{sBand}, 16")
            L("s_cbranch_scc1 L_banddone")
            for n in range(4):
                L(f"buffer_store_dwordx4 {vr(vD+16+4*n,4)}, v{vR}, {WS}, s{sT2} offen{SC}")
                if n < 3: L(f"s_add_u32 s{sT2}, s{sT2}, {144*1024}")
            L.label("L_banddone")
            L(f"s_lshl_b32 s{sT2}, s{sBand}, 3")
            L(f"s_add_u32 s{sXb}, s{sJ1k}, s{sT2}")
            L(f"s_add_u32 s{sXb}, s{sXb}, {FW}")
            L("s_waitcnt vmcnt(0)")
            for x in flag_store(vTk, vTk + 2, sXb): L(x)
        poll(L, vD, 4, vR, sT3, dbg=("fp" in exp))
        SP.st(L, 2)
        L(f"s_mul_i32 s{sT}, s{sJ}, 3072")
        for kv in range(2):
            L(f"s_add_u32 s{sM}, s{sT}, {KE if kv == 0 else VE}")
            L(f"s_mov_b32 m0, s{sM}")
            L(f"s_add_u32 s{sSo}, s{sT}, s{sKV}")
            if kv: L(f"s_add_u32 s{sSo}, s{sSo}, 65536")
            for j in range(3):
                L(f"buffer_load_dwordx4 v{vR}, {WS}, s{sSo} offen offset:{j*1024} sc1 lds")
        L(f"""
        s_add_u32 s{sM}, s{sJ2k}, {QE}
        s_mov_b32 m0, s{sM}
        s_lshl_b32 s{sSo}, s{sHead}, 16
        s_lshl_b32 s{sT}, s{sNb}, 13
        s_add_u32 s{sSo}, s{sSo}, s{sT}
        s_add_u32 s{sSo}, s{sSo}, s{sJ2k}
        buffer_load_dwordx4 v{vR}, {WS}, s{sSo} offen sc1 lds
        buffer_load_dwordx4 v{vR}, {WS}, s{sSo} offen offset:1024 sc1 lds
        s_mov_b32 s{sFl2}, 0
        s_branch L_att
        """)
    sFl = 52; sFl2 = 49
    le = Asm(); loader_tail(le, False)
    lo = Asm(); lo.label("L_lodd"); loader_tail(lo, True)
    vL16 = 3; vXA = 4; vPA = 8; vSA = 10; vVO = 11; vT = 1
    vE = 12; vPk = 20
    NW = 8
    vW = [28 + 4 * i for i in range(NW)]
    vAcc = [60, 76, 92, 108]
    vCt = 124
    vX = 128
    c = Asm()
    c.label("L_comp")
    c(f"""
    v_lshlrev_b32 v{vL16}, 4, v{vL}
    s_lshl_b32 s{sTT}, s{sRb}, 2
    s_add_u32 s{sTT}, s{sTT}, s{sWave}
    v_and_b32 v{vT}, 31, v{vL}
    v_lshlrev_b32 v{vE}, 7, v{vT}
    s_lshl_b32 s{sT}, s{sWave}, 12
    v_add_u32 v{vE}, s{sT}, v{vE}
    v_lshrrev_b32 v{vE+1}, 5, v{vL}
    v_bfe_u32 v{vE+2}, v{vL}, 1, 3
    """)
    for s in range(4):
        c(f"v_or_b32 v{vE+3}, {2*s}, v{vE+1}")
        c(f"v_xor_b32 v{vE+3}, v{vE+3}, v{vE+2}")
        c(f"v_lshl_add_u32 v{vXA+s}, v{vE+3}, 4, v{vE}")
    c(f"""
    v_bfe_u32 v{vE}, v{vL}, 4, 1
    v_lshlrev_b32 v{vE}, 5, v{vE}
    v_and_b32 v{vE+1}, 3, v{vL}
    v_lshl_add_u32 v{vE}, v{vE+1}, 3, v{vE}
    v_lshrrev_b32 v{vE+1}, 5, v{vL}
    v_lshlrev_b32 v{vE+1}, 3, v{vE+1}
    v_bfe_u32 v{vE+2}, v{vL}, 2, 2
    v_add_u32 v{vE+1}, v{vE+1}, v{vE+2}
    v_lshl_add_u32 v{vSA}, v{vE+1}, 6, v{vE}
    v_lshl_add_u32 v{vPA}, v{vE+1}, 7, v{vE}
    v_bfe_u32 v{vE+2}, v{vL}, 3, 1
    v_lshl_add_u32 v{vPA}, v{vE+2}, 6, v{vPA}
    v_xor_b32 v{vPA+1}, 64, v{vPA}
    v_bfe_u32 v{vE}, v{vL}, 4, 1
    v_lshlrev_b32 v{vE}, 17, v{vE}
    v_lshrrev_b32 v{vE+1}, 5, v{vL}
    v_lshl_add_u32 v{vE}, v{vE+1}, 8, v{vE}
    v_and_b32 v{vE+1}, 15, v{vL}
    v_lshl_add_u32 v{vVO}, v{vE+1}, 4, v{vE}
    """)
    c(srdsetup)
    c(f"""
    s_lshl_b32 s{sFl}, s{sG}, 10
    s_lshl_b32 s{sT}, s{sRb}, 6
    s_add_u32 s{sFl}, s{sFl}, s{sT}
    s_lshl_b32 s{sT}, s{sOdd}, 5
    s_add_u32 s{sFl}, s{sFl}, s{sT}
    s_lshl_b32 s{sT}, s{sWave}, 3
    s_add_u32 s{sFl}, s{sFl}, s{sT}
    s_add_u32 s{sFl}, s{sFl}, {FQ}
    s_lshl_b32 s{sFl2}, s{sTT}, 7
    s_lshl_b32 s{sT}, s{sCg}, 3
    s_add_u32 s{sFl2}, s{sFl2}, s{sT}
    s_add_u32 s{sFl2}, s{sFl2}, {FH}
    """)
    c(f"""
    s_lshl_b32 s53, s{sCg}, 18
    s_lshl_b32 s{sT2}, s{sTT}, 10
    s_add_u32 s53, s53, s{sT2}
    s_add_u32 s53, s53, {WS_KV + 65536}
    s_add_u32 s{sT}, s{sOdd}, 18
    s_lshl_b32 s54, s{sG}, s{sT}
    s_add_u32 s54, s54, s{sT2}
    s_mul_i32 s{sT}, s{sOdd}, {WS_KV}
    s_add_u32 s54, s54, s{sT}
    s_add_u32 s{sT}, s{sOdd}, 16
    s_lshl_b32 s55, 1, s{sT}
    """)
    prefetch = f"""
    s_lshl_b32 s{sT}, s2, 2
    s_add_u32 s{sT}, s{sT}, s{sWave}
    v_lshlrev_b32 v{vE}, 7, v{vL}
    s_mov_b32 s4, s46
    s_mov_b32 s5, s47
    s_mov_b32 s6, {1792*1024}
    s_mov_b32 s7, 0x00020000
    s_mov_b32 s36, s8
    s_mov_b32 s37, s9
    s_mov_b32 s38, {512*1024}
    s_mul_i32 s{sT2}, s{sT}, {14*128}
    s_mul_i32 s{sT3}, s{sT}, {12*128}
    s_mov_b64 exec, 0xfff
    buffer_load_dword v{vE+2}, v{vE}, s[24:27], s{sT3} offen
    s_lshl_b32 s{sT3}, s{sT}, 11
    s_mov_b64 exec, 0xffff
    buffer_load_dword v{vE+3}, v{vE}, s[20:23], s{sT3} offen
    s_mov_b64 exec, 0x3fff
    buffer_load_dword v{vE+1}, v{vE}, s[28:31], s{sT2} offen
    buffer_load_dword v{vE+4}, v{vE}, s[4:7], s{sT2} offen
    s_lshl_b32 s{sT3}, s{sT}, 9
    s_mov_b64 exec, 0xf
    buffer_load_dword v{vE+5}, v{vE}, s[36:39], s{sT3} offen
    s_mov_b64 exec, -1
    """
    touch = f"""
    v_lshlrev_b32 v{vE+6}, 19, v{vL}
    buffer_load_dword v{vE+7}, v{vE+6}, {WS}, 0 offen
    v_lshlrev_b32 v{vE+6}, 15, v{vL}
    buffer_load_dword v{vPk}, v{vE+6}, {OUT}, 0 offen
    """
    addr_regs = [vXA, vXA + 1, vXA + 2, vXA + 3, vPA, vPA + 1, vSA]
    PD = 6
    def silu_ep(acc, tile_sreg, tile_add):
        f = [f"s_mov_b32 s{sT3}, {f32(-1.4426950408889634)}"]
        for h in range(2):
            for j in range(8): f.append(f"v_mul_f32 v{vE+j}, s{sT3}, v{acc+8*h+j}")
            for j in range(8): f.append(f"v_exp_f32 v{vE+j}, v{vE+j}")
            for j in range(8): f.append(f"v_add_f32 v{vE+j}, 1.0, v{vE+j}")
            for j in range(8): f.append(f"v_rcp_f32 v{vE+j}, v{vE+j}")
            for j in range(8): f.append(f"v_mul_f32 v{acc+8*h+j}, v{acc+8*h+j}, v{vE+j}")
        for j in range(8): f.append(f"v_cvt_pk_bf16_f32 v{vPk+j}, v{acc+2*j}, v{acc+2*j+1}")
        f += [f"s_mul_i32 s{sT}, s{sTT}, {112*1024}", f"s_add_u32 s{sT2}, s{tile_sreg}, {tile_add}", f"s_lshl_b32 s{sT2}, s{sT2}, 11",
              f"s_add_u32 s{sT}, s{sT}, s{sT2}", f"s_add_u32 s{sT}, s{sT}, {WS_H}",
              f"buffer_store_dwordx4 {vr(vPk,4)}, v{vL16}, {WS}, s{sT} offen{SC}",
              f"buffer_store_dwordx4 {vr(vPk+4,4)}, v{vL16}, {WS}, s{sT} offen offset:1024{SC}"]
        return f
    class CS: pass
    S = CS(); S.win = {r: 0 for r in addr_regs}; S.lq = Q("lgkmcnt", 15); S.bd = set()
    def lds_addr(out, reg, byte):
        w = S.win[reg]
        if not (0 <= byte - w <= 65535 - 512):
            nw_ = (byte // 32768) * 32768
            out.append(f"v_add_u32 v{reg}, {nw_ - w}, v{reg}" if nw_ - w >= 0 else f"v_subrev_u32 v{reg}, {w - nw_}, v{reg}")
            S.win[reg] = nw_; w = nw_
        return byte - w
    def units(odd):
        U = []
        for st in range(8):
            for s in range(4):
                ks = st * 4 + s
                U.append(dict(st=st, ks=ks, acc=2, kind="single", base=slot(st) + BO + s * 1024, swap=True, x=True))
                for nt in range(2):
                    U.append(dict(st=st, ks=ks, acc=nt, kind="pair", nt=nt, base=slot(st) + AO + s * 2048))
        p2 = [3, 2, 0, 1]
        for t in range(3 if odd else 4):
            for ks in range(32):
                if odd and t == 2:
                    U.append(dict(st=10, ks=ks, acc=p2[t], kind="single", base=slot(10) + ks * 1024))
                else:
                    st = 8 + 2 * (t // 2) + ks // 16
                    U.append(dict(st=st, ks=ks, acc=p2[t], kind="pair", nt=t % 2, base=slot(st) + (ks % 16) * 2048))
        U[96 + 24]["bar"] = 10
        if not odd: U[96 + 40]["bar"] = 11
        for i, u in enumerate(U): u["i"] = i
        return U
    def emit_read(out, u):
        for b in (u["st"], u.get("bar")):
            if b is not None and b not in S.bd:
                out.append("s_barrier"); S.bd.add(b)
        if u.get("x"):
            s = u["ks"] % 4
            off = lds_addr(out, vXA + s, slot(u["st"]) + XO)
            out.append(f"ds_read_b128 {vr(vX+4*u['ks'],4)}, v{vXA+s} offset:{off}")
            S.lq.issue(("x", u["ks"]))
        w = vW[u["i"] % NW]
        r, d = (vPA + u["nt"], 512) if u["kind"] == "pair" else (vSA, 256)
        off = lds_addr(out, r, u["base"])
        out.append(f"ds_read_b64_tr_b16 {vr(w,2)}, v{r} offset:{off}"); S.lq.issue(("w", u["i"]))
        out.append(f"ds_read_b64_tr_b16 {vr(w+2,2)}, v{r} offset:{off+d}"); S.lq.issue(("w", u["i"]))
    def group(u, U):
        g = []
        tags = {("w", u["i"]), ("x", u["ks"])} if u["i"] < 96 else {("w", u["i"])}
        if u["i"] % 2 == 0 and u["i"] + 1 < len(U): tags.add(("w", u["i"] + 1))
        w = S.lq.need(tags)
        if w: g.append(w)
        acc = vAcc[u["acc"]]; cc = "0" if u["ks"] == 0 else vr(acc, 16)
        wr = vr(vW[u["i"] % NW], 4); xr = vr(vX + 4 * u["ks"], 4)
        A, B = (xr, wr) if u.get("swap") else (wr, xr)
        g.append(f"v_mfma_f32_32x32x16_bf16 {vr(acc,16)}, {A}, {B}, {cc}")
        if u["i"] + PD < len(U): emit_read(g, U[u["i"] + PD])
        return g
    Ue = units(False); Uo = units(True)
    NCOM = 96 + 34
    pre = []
    if "tch0" in exp: c(touch)
    for i in range(PD): emit_read(pre, Ue[i])
    for x in pre: c(x)
    if "nopf" not in exp: c(prefetch)
    if "tch1" in exp: c(touch)
    for i in range(96):
        for x in group(Ue[i], Ue): c(x)
        if i == 60: token_issue(c, vCt)
        if i == 92: token_finish(c, vCt, "s_waitcnt vmcnt(0)")
    SP.st(c, 1)
    if SP.on: c(S.lq.drain())
    G = [group(Ue[i], Ue) for i in range(96, NCOM)]
    a2 = vAcc[2]
    f = [f"s_cmp_lg_u32 s{sOdd}, 0", f"s_cselect_b32 s{sT3}, 1.0, {f32(QSCALE)}"]
    for j in range(8): f.append(f"v_cvt_pk_bf16_f32 v{a2+j}, v{a2+2*j}, v{a2+2*j+1}")
    f += [f"buffer_store_dwordx4 {vr(a2,4)}, v{vVO}, {WS}, s53 offen{SC}",
          f"buffer_store_dwordx4 {vr(a2+4,4)}, v{vVO}, {WS}, s53 offen offset:512{SC}"]
    for tq in range(2):
        acc = vAcc[tq]; pk = vPk if tq == 0 else vE
        for j in range(16): f.append(f"v_mul_f32 v{acc+j}, s{sT3}, v{acc+j}")
        for j in range(8): f.append(f"v_cvt_pk_bf16_f32 v{pk+j}, v{acc+2*j}, v{acc+2*j+1}")
        f.append(f"buffer_store_dwordx4 {vr(pk,4)}, v{vL16}, {WS}, s54 offen{SC}")
        f.append("s_add_u32 s54, s54, s55")
        f.append(f"buffer_store_dwordx4 {vr(pk+4,4)}, v{vL16}, {WS}, s54 offen{SC}")
        f.append("s_add_u32 s54, s54, s55")
    spread(G, f, 2, 9)
    qflag = ["s_waitcnt vmcnt(0)"] + flag_store(vCt, vCt + 2, sFl)
    if FS and SP.on: qflag = [SP.line(4)] + qflag[:1] + [SP.line(5), "s_waitcnt lgkmcnt(0)"] + qflag[1:]
    QF = int(exp.split("qf")[1][:2]) if "qf" in exp else 22
    G[QF] += qflag
    for g in G:
        for x in g: c(x)
    c(f"s_cmp_lg_u32 s{sOdd}, 0")
    c("s_cbranch_scc1 L_codd")
    saved = (dict(S.win), S.lq.copy(), set(S.bd))
    n0 = NCOM - 96
    ce = Asm()
    G = [group(Ue[i], Ue) for i in range(NCOM, len(Ue))]
    spread(G, silu_ep(vAcc[3], sFA, 0), 35 - n0, 63 - n0)
    spread(G, silu_ep(vAcc[2], sFA, 1), 67 - n0, 95 - n0)
    spread(G, silu_ep(vAcc[0], sFB, 0), 99 - n0, 127 - n0)
    for g in G:
        for x in g: ce(x)
    SP.st(ce, 2)
    ce(attdec)
    ce("s_nop 1")
    for x in silu_ep(vAcc[1], sFB, 1): ce(x)
    ce("s_branch L_att2")
    S.win, S.lq, S.bd = saved
    co = Asm()
    co.label("L_codd")
    G = [group(Uo[i], Uo) for i in range(NCOM, len(Uo))]
    spread(G, silu_ep(vAcc[3], sFA, 0), 35 - n0, 63 - n0)
    spread(G, silu_ep(vAcc[2], sFA, 1), 67 - n0, 95 - n0)
    for g in G:
        for x in g: co(x)
    SP.st(co, 2)
    last = silu_ep(vAcc[0], sFB, 0)
    co(attdec)
    co(f"s_cmp_lg_u32 s{sCg}, 1")
    co("s_cbranch_scc1 L_nogate")
    cg = Asm()
    cg(f"v_lshrrev_b32 v{vT}, 5, v{vL}")
    cg(f"v_lshlrev_b32 v{vT}, 4, v{vT}")
    acc = vAcc[1]
    GP = 7
    for s in range(GP):
        cg(f"buffer_load_dwordx4 {vr(vW[s%NW],4)}, v{vT}, s[40:43], 0 offen offset:{s*32}")
    G = []
    for s in range(32):
        rem = min(GP - 1, 31 - s)
        g = [f"s_waitcnt vmcnt({rem})"]
        cc = "0" if s == 0 else vr(acc, 16)
        g.append(f"v_mfma_f32_32x32x16_bf16 {vr(acc,16)}, {vr(vW[s%NW],4)}, {vr(vX+4*s,4)}, {cc}")
        if s + GP < 32:
            g.append(f"buffer_load_dwordx4 {vr(vW[(s+GP)%NW],4)}, v{vT}, s[40:43], 0 offen offset:{(s+GP)*32}")
        G.append(g)
    spread(G, last[:-2], 1, 30)
    for g in G:
        for x in g: cg(x)
    for x in last[-2:]: cg(x)
    cg(f"""
    s_mov_b32 s{sT3}, {f32(-1.4426950408889634)}
    s_lshl_b32 s{sT}, s{sTT}, 7
    s_add_u32 s{sT2}, s{sT}, {FG}
    s_add_u32 s{sT}, s{sT}, {WS_G}
    v_lshlrev_b32 v{vT}, 2, v{vL}
    s_nop 5
    v_mul_f32 v{vE}, s{sT3}, v{acc}
    v_exp_f32 v{vE}, v{vE}
    s_nop 0
    v_add_f32 v{vE}, 1.0, v{vE}
    v_rcp_f32 v{vE}, v{vE}
    s_mov_b64 exec, 0xffffffff
    buffer_store_dword v{vE}, v{vT}, {WS}, s{sT} offen{SC}
    s_mov_b64 exec, -1
    s_waitcnt vmcnt(0)
    """)
    for x in flag_store(vCt, vCt + 2, sT2): cg(x)
    cg("s_branch L_att2")
    cn = Asm()
    cn.label("L_nogate")
    cn("s_nop 0")
    for x in last: cn(x)
    cn("s_branch L_att2")
    t = Asm()
    t.label("L_att")
    t("s_waitcnt vmcnt(0)")
    t.label("L_att2")
    vL16 = 1; vKA = 4; vVA = 3; vT = 5; vT2 = 6; vM = 7
    vQ = 8; vK = [12, 16]; vV = [[20, 24], [28, 32]]; vP = 36; vNM = 44; vS = [60, 76]; vO = 92
    vFA = 108; NFB = 3
    vFB = [140 + 12 * i for i in range(NFB)]
    vWo = 176
    vGq = 240; vGf = 241; vTk2 = 242
    vPl = 246; vPl2 = 250; vPo = 252; vVB = 253
    sVM = 30; sW0 = 24; sW1 = 25; sH = 26; sD = 27; sWo = 28; sDs = 29
    t(f"""
    v_lshlrev_b32 v{vL16}, 4, v{vL}
    v_mov_b32 v{vTk2}, s{sTok}
    v_mov_b32 v{vTk2+1}, s{sTok+1}
    v_mov_b32 v{vTk2+2}, 0
    s_lshr_b32 s{sT}, s{sWave}, 1
    s_mul_i32 s{sT3}, s{sT}, {28*1024}
    s_mul_i32 s{sW0}, s{sNb}, {2*144*1024}
    s_add_u32 s{sW0}, s{sW0}, {WS_W}
    s_lshl_b32 s{sT}, s{sT}, 13
    s_add_u32 s{sWo}, s{sW0}, s{sT}
    s_add_u32 s{sW0}, s{sW0}, s{sT3}
    s_add_u32 s{sW0}, s{sW0}, {32*1024}
    s_add_u32 s{sW1}, s{sW0}, {144*1024}
    s_lshl_b32 s{sH}, s{sHead}, 1
    s_and_b32 s{sT2}, s{sWave}, 1
    s_add_u32 s{sTT}, s{sH}, s{sT2}
    s_mul_i32 s{sH}, s{sTT}, {112*1024}
    s_add_u32 s{sH}, s{sH}, s{sT3}
    s_add_u32 s{sH}, s{sH}, {WS_H}
    v_add_u32 v{vKA}, {KE}, v{vL16}
    v_and_b32 v{vT}, 15, v{vL}
    v_lshlrev_b32 v{vT}, 4, v{vT}
    v_and_b32 v{vT2}, 32, v{vL}
    v_lshlrev_b32 v{vT2}, 3, v{vT2}
    v_add_u32 v{vVA}, v{vT}, v{vT2}
    v_add_u32 v{vVB}, {VL}, v{vVA}
    v_add_u32 v{vVA}, {VE}, v{vVA}
    s_mov_b32 s{sVM}, 0x0000ffff
    s_mov_b32 s{sVM+1}, 0x0000ffff
    s_mov_b32 s{sT}, 0x3f803f80
    v_and_b32 v{vT}, 27, v{vL}
    v_cmp_eq_u32 vcc, 16, v{vT}
    v_mov_b32 v{vT2}, s{sT}
    s_lshl_b32 s{sT}, s{sWave}, 10
    v_cndmask_b32 v{vT}, 0, v{vT2}, vcc
    v_add_u32 v{vT2}, s{sT}, v{vKA}
    s_lshr_b32 s{sT}, s{sWave}, 2
    s_mul_i32 s{sD}, s{sT}, {VL}
    s_lshl_b32 s{sDs}, s{sT}, 16
    s_add_u32 s{sDs}, s{sDs}, s{sKV}
    s_add_u32 s{sDs}, s{sDs}, {NE*1024}
    s_and_b32 s{sT}, s{sWave}, 3
    s_mul_i32 s{sT2}, s{sT}, 7168
    s_mul_i32 s{sT3}, s{sT}, 6144
    s_add_u32 s{sT3}, s{sT3}, 28672
    """)
    for b in range(2):
        for g in range(2):
            for j in range(4):
                t(f"v_mov_b32 v{vV[b][g]+j}, v{vT}")
    t("s_barrier")
    SP.st(t, 3)
    if SP.on: t("s_waitcnt lgkmcnt(0)")
    vq = Q("vmcnt", 63); lq = Q("lgkmcnt", 15)
    vq.issue("hst")
    t(f"ds_read_b128 {vr(vQ,4)}, v{vT2} offset:{QE-KE}"); lq.issue("q")
    sX1 = 20; sX2 = 21; sX3 = 22; sX4 = 23
    t(f"""
    s_add_u32 s{sX1}, s{sD}, s{sT2}
    s_add_u32 s{sX2}, s{sDs}, s{sT2}
    s_add_u32 s{sX3}, s{sD}, s{sT3}
    s_add_u32 s{sX4}, s{sDs}, s{sT3}
    """)
    def kvdma(cx, j):
        sl, ss = (sX1, sX2) if cx == 1 else (sX3, sX4)
        L = []
        if j == 4:
            L.append(f"s_add_u32 s{sl}, s{sl}, 4096"); L.append(f"s_add_u32 s{ss}, s{ss}, 4096")
        if j % 4 == 0: L.append(f"s_mov_b32 m0, s{sl}"); L.append("s_nop 0")
        L.append(f"buffer_load_dwordx4 v{vL16}, {WS}, s{ss} offen offset:{(j%4)*1024} sc1 lds")
        return (f"c{cx}", L)
    dmas = [kvdma(1, j) for j in range(7)] + [kvdma(2, j) for j in range(6)]
    def emit_dma(n):
        for _ in range(n):
            tag, L = dmas.pop(0)
            for x in L: t(x)
            vq.issue(tag)
    def fload(j, which):
        b = vFB[j % NFB] + 4 * which
        s = (sW0, sW1, sH)[which]
        t(f"buffer_load_dwordx4 {vr(b,4)}, v{vL16}, {WS}, s{s} offen offset:{(j%4)*1024} sc1")
        if j % 4 == 3: t(f"s_add_u32 s{s}, s{s}, 4096")
        vq.issue(("f", j, which))
    def fmfma(n):
        j, i = n // 2, n % 2
        t(vq.need({("f", j, i), ("f", j, 2)}))
        b = vFB[j % NFB]
        cc = "0" if j == 0 else vr(vFA + 16 * i, 16)
        t(f"v_mfma_f32_32x32x16_bf16 {vr(vFA+16*i,16)}, {vr(b+4*i,4)}, {vr(b+8,4)}, {cc}")
    def woload(k):
        if k == 8: t(f"s_add_u32 s{sWo}, s{sWo}, {144*1024 - 8192}")
        t(f"buffer_load_dwordx4 {vr(vWo+4*k,4)}, v{vL16}, {WS}, s{sWo} offen offset:{(k%4)*1024} sc1")
        if k % 4 == 3: t(f"s_add_u32 s{sWo}, s{sWo}, 4096")
        vq.issue("wo")
    def readK(i):
        if i < NE: t(f"ds_read_b128 {vr(vK[i%2],4)}, v{vKA} offset:{i*1024}")
        else: t(f"ds_read_b128 {vr(vK[i%2],4)}, v{vL16} offset:{KL+(i-NE)*1024}")
        lq.issue(("k", i))
    def readV(i):
        r, o = (vVA, i * 1024) if i < NE else (vVB, (i - NE) * 1024)
        t(f"s_mov_b64 exec, s[{sVM}:{sVM+1}]")
        t(f"ds_read_b128 {vr(vV[i%2][0],4)}, v{r} offset:{o}"); lq.issue(("v", i, 0))
        t(f"ds_read_b128 {vr(vV[i%2][1],4)}, v{r} offset:{o+512}"); lq.issue(("v", i, 1))
        t(f"s_mov_b64 exec, -1")
    def mS(i, cc):
        t(lq.need({("k", i), "q"}))
        t(f"v_mfma_f32_32x32x16_bf16 {vr(vS[i%2],16)}, {vr(vK[i%2],4)}, {vr(vQ,4)}, {cc}")
    def mPV(i, g, first=False):
        t(lq.need({("v", i, g)}))
        cc = "0" if first else vr(vO, 16)
        t(f"v_mfma_f32_32x32x16_bf16 {vr(vO,16)}, {vr(vV[i%2][g],4)}, {vr(vP+4*g,4)}, {cc}")
    readK(0); readK(1); readV(0)
    mS(0, "0")
    emit_dma(4)
    t("s_nop 5")
    S0 = vS[0]
    t(f"""
    v_max3_f32 v{vM}, v{S0}, v{S0+1}, v{S0+2}
    v_max3_f32 v{vT}, v{S0+3}, v{S0+4}, v{S0+5}
    v_max3_f32 v{vM}, v{vM}, v{S0+6}, v{S0+7}
    v_max3_f32 v{vT}, v{vT}, v{S0+8}, v{S0+9}
    v_max3_f32 v{vM}, v{vM}, v{S0+10}, v{S0+11}
    v_max3_f32 v{vT}, v{vT}, v{S0+12}, v{S0+13}
    v_max3_f32 v{vM}, v{vM}, v{S0+14}, v{S0+15}
    v_max_f32 v{vM}, v{vM}, v{vT}
    v_mov_b32 v{vT}, v{vM}
    s_nop 1
    v_permlane32_swap_b32 v{vM}, v{vT}
    s_nop 1
    v_max_f32 v{vM}, v{vM}, v{vT}
    """)
    for j in range(16): t(f"v_sub_f32 v{vNM+j}, 0, v{vM}")
    t("s_nop 1")
    mS(0, vr(vNM, 16))
    NT = 64
    F0 = 8; FEND = F0 + 56
    PI, PT = 3, 5
    B1, B2 = NE - 2, 38
    dma_at = {0: 3, 2: 1, 4: 1, 6: 1, 7: 1, 8: 1, 9: 1}
    floads = [(j, w) for j in range(28) for w in (0, 2, 1)]
    nfl = [0]
    def emit_floads(upto):
        while nfl[0] < min(upto, len(floads)):
            fload(*floads[nfl[0]]); nfl[0] += 1
    pr = {0: 3, 6: 2, 8: 1, 9: 0, 10: 3, 27: 2, 34: 1, 37: 0, 38: 3, 52: 2, 59: 1, 62: 0}
    for i in range(NT):
        Sx = vS[i % 2]
        E = lambda j: t(f"v_exp_f32 v{Sx+j}, v{Sx+j}")
        C = lambda j: t(f"v_cvt_pk_bf16_f32 v{vP+j}, v{Sx+2*j}, v{Sx+2*j+1}")
        if i == B1:
            t(vq.need({"c1"})); t("s_barrier")
        if i == B2:
            t(vq.need({"c2"})); t("s_barrier")
        if i in pr: t(f"s_setprio {pr[i]}")
        if SP.on and i in (B1, B2) and not FS:
            SP.st(t, {B1: 4, B2: 5}[i]); t(lq.drain())
        if i + 1 < NT: mS(i + 1, vr(vNM, 16))
        if i + 2 < NT: readK(i + 2)
        if i == 0: t("s_nop 9")
        hasF = F0 <= i < FEND
        n = i - F0
        if hasF:
            E(0); E(1); E(2); C(0); E(3)
            mPV(i - 1, 1)
            if i + 1 < NT: readV(i + 1)
            E(4); C(1); E(5); E(6); C(2); E(7)
            fmfma(n)
            done = (n + 1) // 2
            emit_floads(3 * (NFB - 1) + 3 * done + (3 if n % 2 == 0 else 1))
            E(8); C(3); E(9); E(10); E(11); C(4)
            mPV(i, 0)
            emit_floads(3 * (NFB - 1) + 3 * done + (3 if n % 2 == 0 else 2))
            if i in dma_at: emit_dma(dma_at[i])
            if 24 <= i < 56 and i % 2 == 0: woload((i - 24) // 2)
            E(12); C(5); E(13); E(14); C(6); E(15)
            if i == NT - 1: t(f"v_sub_f32 v{vGf}, 1.0, v{vGf}")
            else: t("s_nop 0")
            C(7)
        else:
            E(0); E(1); E(2); C(0); E(3); E(4); C(1)
            if i > 0: mPV(i - 1, 1)
            readV(i + 1)
            E(5); E(6); C(2); E(7); E(8); C(3); E(9); E(10)
            mPV(i, 0, first=(i == 0))
            if i in dma_at: emit_dma(dma_at[i])
            if i == 1:
                t(vq.need({"hst"}))
                t(f"s_cmp_eq_u32 s{sFl2}, 0")
                t("s_cbranch_scc1 L_nohf")
                for x in flag_store(vTk2, vTk2 + 2, sFl2): t(x)
                t.label("L_nohf")
            if i == PI:
                t(f"""
                s_lshr_b32 s{sT}, s{sNb}, 1
                s_lshl_b32 s{sT}, s{sT}, 10
                s_add_u32 s{sT3}, s{sT}, {FW}
                buffer_load_dwordx4 v[{vPl}:{vPl+3}], v{vL16}, {WS}, s{sT3} offen sc1
                v_lshlrev_b32 v{vPo}, 3, v{vL}
                s_lshl_b32 s{sT}, s{sTT}, 7
                v_add_u32 v{vPo}, s{sT}, v{vPo}
                s_add_u32 s{sT}, s{sT}, {FG - FH}
                v_writelane_b32 v{vPo}, s{sT}, 16
                s_lshl_b32 s{sT}, s{sQb}, 7
                s_add_u32 s{sT}, s{sT}, {FG - FH}
                v_writelane_b32 v{vPo}, s{sT}, 17
                s_mov_b32 s{sT2}, {FH}
                s_mov_b64 s[4:5], 0x3ffff
                s_mov_b64 exec, s[4:5]
                buffer_load_dwordx2 v[{vPl2}:{vPl2+1}], v{vPo}, {WS}, s{sT2} offen sc1
                s_mov_b64 exec, -1
                """)
                vq.issue("p"); vq.issue("p")
            if i == PT:
                t(vq.need({"p"}))
                poll_cmp(t, vPl, 4)
                t(f"v_cmp_ne_u64 s[10:11], s[{sTok}:{sTok+1}], v[{vPl2}:{vPl2+1}]")
                t("s_nop 1")
                t("s_and_b64 s[10:11], s[10:11], s[4:5]")
                t("s_or_b64 vcc, vcc, s[10:11]")
                t("s_cbranch_vccz L_pok")
                poll(t, vPl, 4, vL16, sT3)
                poll(t, vPl2, 2, vPo, sT2, mask="s[4:5]")
                t.label("L_pok")
                t(f"""
                v_and_b32 v{vPo}, 31, v{vL}
                v_lshlrev_b32 v{vPo}, 2, v{vPo}
                s_lshl_b32 s{sT}, s{sTT}, 7
                s_add_u32 s{sT}, s{sT}, {WS_G}
                s_lshl_b32 s{sT2}, s{sQb}, 7
                s_add_u32 s{sT2}, s{sT2}, {WS_G}
                buffer_load_dword v{vGf}, v{vPo}, {WS}, s{sT} offen sc1
                buffer_load_dword v{vGq}, v{vPo}, {WS}, s{sT2} offen sc1
                """)
                vq.issue("g"); vq.issue("g")
            if PT <= i < F0: emit_floads(3 * (NFB - 1) * (i - PT + 1) // (F0 - PT))
            E(11); C(4); E(12); C(5); E(13); E(14); C(6); E(15)
            t("s_nop 0")
            C(7)
    assert not dmas
    t("s_nop 1")
    mPV(NT - 1, 1)
    for r in range(32): t(f"v_mul_f32 v{vFA+r}, v{vFA+r}, v{vGf}")
    if not FS: SP.st(t, 6)
    t(f"""
    v_add_f32 v{vT}, abs(v{vO}), abs(v{vO+1})
    v_add_f32 v{vT2}, abs(v{vO+2}), abs(v{vO+3})
    v_add_f32 v{vT}, v{vT}, abs(v{vO+4})
    v_add_f32 v{vT2}, v{vT2}, abs(v{vO+5})
    v_add_f32 v{vT}, v{vT}, abs(v{vO+6})
    v_add_f32 v{vT2}, v{vT2}, abs(v{vO+7})
    v_add_f32 v{vT}, v{vT}, v{vT2}
    s_mov_b32 s{sT}, 0x7f000000
    s_mov_b32 s{sT2}, 0x53800000
    v_cmp_nle_f32 vcc, v{vT}, s{sT}
    v_cmp_nle_f32 s[20:21], v{vO+8}, s{sT2}
    s_nop 1
    s_or_b64 vcc, vcc, s[20:21]
    s_cbranch_vccnz L_slow
    """)
    t.label("L_fin")
    vOf = vNM
    t(f"""
    v_rcp_f32 v{vT}, v{vO+8}
    s_lshl_b32 s{sT}, s{sQb}, 15
    s_lshl_b32 s{sT2}, s{sHead}, 10
    s_add_u32 s{sT}, s{sT}, s{sT2}
    s_add_u32 s{sT}, s{sT}, {WS_O}
    v_mul_f32 v{vT}, v{vT}, v{vGq}
    """)
    for j in range(8): t(f"v_mul_f32 v{vO+j}, v{vO+j}, v{vT}")
    for j in range(4): t(f"v_cvt_pk_bf16_f32 v{vP+j}, v{vO+2*j}, v{vO+2*j+1}")
    t(f"""
    buffer_store_dwordx4 {vr(vP,4)}, v{vL16}, {WS}, s{sT} offen sc1
    s_lshl_b32 s{sT}, s{sQb}, 8
    s_lshl_b32 s{sT2}, s{sHead}, 3
    s_add_u32 s{sT}, s{sT}, s{sT2}
    s_add_u32 s{sT}, s{sT}, {FO}
    s_lshr_b32 s{sD}, s{sWave}, 1
    s_lshl_b32 s{sT3}, s{sTT}, 8
    s_lshl_b32 s{sT2}, s{sD}, 6
    s_add_u32 s{sT3}, s{sT3}, s{sT2}
    s_add_u32 s{sT3}, s{sT3}, {FO}
    s_lshl_b32 s{sH}, s{sTT}, 15
    s_lshl_b32 s{sT2}, s{sD}, 13
    s_add_u32 s{sH}, s{sH}, s{sT2}
    s_add_u32 s{sH}, s{sH}, {WS_O}
    s_add_u32 s{sW0}, s{sH}, 4096
    v_lshlrev_b32 v{vPo}, 3, v{vL}
    s_mov_b64 s[4:5], 0xff
    s_setprio 3
    s_waitcnt vmcnt(0)
    """)
    for x in flag_store(vTk2, vTk2 + 2, sT): t(x)
    if not FS: SP.st(t, 7)
    t("s_barrier")
    poll(t, vPl, 2, vPo, sT3, mask="s[4:5]")
    SP.st(t, 8)
    if SP.on: t("s_waitcnt lgkmcnt(0)")
    for k in range(8):
        t(f"buffer_load_dwordx4 {vr(vOf+4*k,4)}, v{vL16}, {WS}, s{sH if k < 4 else sW0} offen offset:{(k%4)*1024} sc1")
    t(f"""
    s_and_b32 s{sT2}, s{sWave}, 1
    s_lshl_b32 s{sT2}, s{sT2}, 15
    s_lshl_b32 s{sT3}, s{sD}, 13
    s_add_u32 s{sT3}, s{sT3}, s{sT2}
    v_add_u32 v{vT}, s{sT3}, v{vL16}
    s_lshl_b32 s{sT3}, s{sD}, 11
    s_add_u32 s{sT3}, s{sT3}, s{sT2}
    v_add_u32 v{vT2}, s{sT3}, v{vL16}
    v_and_b32 v{vPo}, 31, v{vL}
    v_lshlrev_b32 v{vPo}, 10, v{vPo}
    v_lshrrev_b32 v{vM}, 5, v{vL}
    v_lshl_add_u32 v{vPo}, v{vM}, 4, v{vPo}
    s_lshl_b32 s{sT}, s{sTT}, 15
    s_lshl_b32 s{sT2}, s{sNb}, 7
    s_add_u32 s{sT}, s{sT}, s{sT2}
    s_lshl_b32 s{sT2}, s{sD}, 5
    s_add_u32 s{sT}, s{sT}, s{sT2}
    """)
    for k in range(8):
        t(f"s_waitcnt vmcnt({7-k})")
        for i in range(2):
            t(f"v_mfma_f32_32x32x16_bf16 {vr(vFA+16*i,16)}, {vr(vWo+32*i+4*k,4)}, {vr(vOf+4*k,4)}, {vr(vFA+16*i,16)}")
    t("s_nop 10")
    for u in range(8):
        if u == 4: t("s_nop 0")
        t(f"ds_write_b128 v{vT}, {vr(vFA+4*u,4)} offset:{u*1024}")
    t("s_waitcnt lgkmcnt(0)")
    t("s_barrier")
    vR = vFB[0]
    for p in range(4):
        for u in range(2):
            t(f"ds_read_b128 {vr(vR+16*u+4*p,4)}, v{vT2} offset:{p*8192+u*1024}")
    t("s_waitcnt lgkmcnt(0)")
    for u in range(2):
        b = vR + 16 * u
        for r in range(4): t(f"v_add_f32 v{b+r}, v{b+r}, v{b+4+r}")
        for r in range(4): t(f"v_add_f32 v{b+8+r}, v{b+8+r}, v{b+12+r}")
        for r in range(4): t(f"v_add_f32 v{b+r}, v{b+r}, v{b+8+r}")
    t(f"""
    v_cvt_pk_bf16_f32 v{vP}, v{vR}, v{vR+1}
    v_cvt_pk_bf16_f32 v{vP+1}, v{vR+2}, v{vR+3}
    v_cvt_pk_bf16_f32 v{vP+2}, v{vR+16}, v{vR+17}
    v_cvt_pk_bf16_f32 v{vP+3}, v{vR+18}, v{vR+19}
    s_nop 1
    v_permlane32_swap_b32 v{vP}, v{vP+2}
    v_permlane32_swap_b32 v{vP+1}, v{vP+3}
    buffer_store_dwordx4 {vr(vP,4)}, v{vPo}, {OUT}, s{sT} offen
    """)
    if SP.on:
        t("s_waitcnt vmcnt(0)")
        SP.st(t, 9)
        t("s_memrealtime s[60:61]")
        t("s_waitcnt lgkmcnt(0)")
        t("s_mov_b32 s94, s101")
        t("s_mov_b32 s96, s60")
        SP.flush(t, WS, sWave, 12, sT)
    t.label("L_end")
    t("s_endpgm")
    b = Asm()
    b.label("L_slow")
    Sx = vS[0]
    b(f"s_mov_b32 s{sT}, 0xff800000")
    b(f"v_mov_b32 v{vM}, s{sT}")
    b(f"v_mov_b32 v{vKA}, v{vL16}")
    b(f"v_subrev_u32 v{vVA}, {VE - 65536}, v{vVA}")
    for j in range(16): b(f"v_mov_b32 v{vO+j}, 0")
    b("s_mov_b32 s22, 0")
    b.label("L_slowloop")
    b(f"""
    buffer_load_dwordx4 {vr(vK[0],4)}, v{vKA}, {WS}, s{sKV} offen sc1
    s_mov_b64 exec, s[{sVM}:{sVM+1}]
    buffer_load_dwordx4 {vr(vV[0][0],4)}, v{vVA}, {WS}, s{sKV} offen sc1
    buffer_load_dwordx4 {vr(vV[0][1],4)}, v{vVA}, {WS}, s{sKV} offen offset:512 sc1
    s_mov_b64 exec, -1
    s_waitcnt vmcnt(0)
    v_mfma_f32_32x32x16_bf16 {vr(Sx,16)}, {vr(vK[0],4)}, {vr(vQ,4)}, 0
    v_add_u32 v{vKA}, 1024, v{vKA}
    v_add_u32 v{vVA}, 1024, v{vVA}
    s_nop 9
    v_max3_f32 v{vT}, v{Sx}, v{Sx+1}, v{Sx+2}
    v_max3_f32 v{vT}, v{vT}, v{Sx+3}, v{Sx+4}
    v_max3_f32 v{vT}, v{vT}, v{Sx+5}, v{Sx+6}
    v_max3_f32 v{vT}, v{vT}, v{Sx+7}, v{Sx+8}
    v_max3_f32 v{vT}, v{vT}, v{Sx+9}, v{Sx+10}
    v_max3_f32 v{vT}, v{vT}, v{Sx+11}, v{Sx+12}
    v_max3_f32 v{vT}, v{vT}, v{Sx+13}, v{Sx+14}
    v_max_f32 v{vT}, v{vT}, v{Sx+15}
    v_mov_b32 v{vT2}, v{vT}
    s_nop 1
    v_permlane32_swap_b32 v{vT}, v{vT2}
    s_nop 1
    v_max3_f32 v{vT}, v{vT}, v{vT2}, v{vM}
    v_sub_f32 v{vT2}, v{vM}, v{vT}
    v_exp_f32 v{vT2}, v{vT2}
    v_mov_b32 v{vM}, v{vT}
    """)
    for j in range(16): b(f"v_mul_f32 v{vO+j}, v{vO+j}, v{vT2}")
    for j in range(16): b(f"v_sub_f32 v{Sx+j}, v{Sx+j}, v{vM}")
    for j in range(16): b(f"v_exp_f32 v{Sx+j}, v{Sx+j}")
    b("s_nop 0")
    for j in range(8): b(f"v_cvt_pk_bf16_f32 v{vP+j}, v{Sx+2*j}, v{Sx+2*j+1}")
    b(f"""
    s_nop 1
    v_mfma_f32_32x32x16_bf16 {vr(vO,16)}, {vr(vV[0][0],4)}, {vr(vP,4)}, {vr(vO,16)}
    v_mfma_f32_32x32x16_bf16 {vr(vO,16)}, {vr(vV[0][1],4)}, {vr(vP+4,4)}, {vr(vO,16)}
    s_add_u32 s22, s22, 1
    s_cmp_lt_u32 s22, 64
    s_nop 11
    s_cbranch_scc1 L_slowloop
    s_branch L_fin
    """)
    check(a.lines + c.lines + ce.lines + t.lines[2:], "even")
    check(a.lines + c.lines + co.lines + cg.lines + t.lines[2:90], "odd_gate")
    check(a.lines + c.lines + co.lines + cn.lines + t.lines[2:90], "odd")
    check(a.lines + l.lines + le.lines + t.lines[:90], "loader")
    check(a.lines + l.lines + lo.lines + t.lines[:90], "loader_odd")
    check(b.lines + b.lines, "slow")
    nb = lambda L: sum(1 for x in L if "s_barrier" in x)
    print("barriers", nb(c.lines + ce.lines), nb(l.lines + le.lines), nb(c.lines + co.lines), nb(l.lines + lo.lines), nb(t.lines))
    return khead(name) + "".join(x.text() for x in (a, l, le, lo, c, ce, co, cg, cn, t, b)) + kd(name, 256, 102)

if __name__ == "__main__":
    import sys
    NAME = "gated_mix__softmax_full_mha__dense_activation_silu__prompt"
    ref = open(f"cdna_kernels/{NAME}.s.ref").read().split("\n")
    hdr = [x for x in ref if x.startswith(";") and "@launch" not in x and "Override launch" not in x and "grid=ceil" not in x]
    dst = sys.argv[1] if len(sys.argv) > 1 else f"cdna_kernels/{NAME}.s"
    ST = int(sys.argv[2]) if len(sys.argv) > 2 else 0
    aslist = ST > 0 or (len(sys.argv) > 4)
    out = "\n".join(hdr) + "\n"
    if aslist: out += f"; @launch kernel={NAME}_kernel grid=(256,1,1) block=(512,1,1) lds=163840\n"
    else: out += "; @launch grid=(256,1,1) block=(512,1,1) lds=163840\n"
    out += '.amdgcn_target "amdgcn-amd-amdhsa--gfx950"\n'
    out += gen(NAME + "_kernel", stamps=ST, exp=(sys.argv[3] if len(sys.argv) > 3 else ""))
    open(dst, "w").write(out)
    print("wrote", dst, len(out))
```

```python
from asmlib import *
from k1 import f32, QSCALE
from k1b import spread
import re

WS_Q = 0; WS_KV = 2 << 20; WS_O = 6 << 20; WS_H = 8 << 20; WS_W = 16 << 20; WS_G = 20 << 20
WS_F = 24 << 20
FQ = WS_F
FH = WS_F + 0x20000
FW = WS_F + 0x40000
FG = WS_F + 0x50000
WS_SIZE = 32 << 20
SC = " sc1"
SPIN_MAX = 20000

def gen(name, stamps=0, exp=""):
    def P(key, dflt):
        m = re.search(key + r"(\d+)", exp)
        return int(m.group(1)) if m else dflt
    sWave = 12; sRb = 13; sCg = 14; sT = 15; sT2 = 16; sT3 = 17; sTT = 18; sFA = 19; sFB = 50; sOdd = 51; sG = 59; sT4 = 95
    sTok = 72; sGr = 10; sDone = 11
    DBG = "s[64:67]"; OUT = "s[68:71]"; WS = "s[32:35]"
    vL = 2
    uid = [0]
    SP = Stamper(stamps >= 2, base=74, slot=0)
    if stamps == 3: SP.ins = "s_memrealtime"
    FS = "fs" in exp
    PS = "ps" in exp and SP.on
    TSL = [int(x) for x in re.search(r"ts([\d.]+)", exp).group(1).split(".")] if re.search(r"ts\d", exp) else None
    a = Asm()
    ool = Asm()
    a("""
    s_cmp_ge_u32 s2, 256
    s_cbranch_scc1 L_end
    """)
    SP.st(a, 0)
    if SP.on: a("s_memrealtime s[60:61]\ns_waitcnt lgkmcnt(0)\ns_mov_b32 s101, s60")
    a(f"""
    s_load_dwordx4 s[4:7], s[0:1], 0
    s_load_dwordx2 s[8:9], s[0:1], 16
    s_load_dwordx4 s[44:47], s[0:1], 32
    s_load_dwordx4 s[52:55], s[0:1], 48
    s_load_dwordx4 s[60:63], s[0:1], 64
    v_lshrrev_b32 v1, 6, v0
    v_and_b32 v{vL}, 63, v0
    v_readfirstlane_b32 s{sWave}, v1
    s_and_b32 s{sT}, s2, 7
    s_lshr_b32 s{sT2}, s2, 3
    s_and_b32 s{sRb}, s{sT}, 1
    s_lshl_b32 s{sRb}, s{sRb}, 3
    s_and_b32 s{sT3}, s{sT2}, 7
    s_add_u32 s{sRb}, s{sRb}, s{sT3}
    s_lshr_b32 s{sCg}, s{sT}, 1
    s_lshl_b32 s{sCg}, s{sCg}, 2
    s_lshr_b32 s{sT3}, s{sT2}, 3
    s_add_u32 s{sCg}, s{sCg}, s{sT3}
    s_and_b32 s{sOdd}, s{sCg}, 1
    s_lshr_b32 s{sG}, s{sCg}, 1
    s_lshr_b32 s{sT}, s{sCg}, 2
    s_mul_i32 s{sT}, s{sT}, 14
    s_and_b32 s{sT2}, s{sCg}, 3
    s_lshl_b32 s{sT2}, s{sT2}, 3
    s_lshr_b32 s{sFA}, 0x0c080400, s{sT2}
    s_and_b32 s{sFA}, s{sFA}, 0xff
    s_add_u32 s{sFA}, s{sFA}, s{sT}
    s_lshr_b32 s{sFB}, 0x070a0602, s{sT2}
    s_and_b32 s{sFB}, s{sFB}, 0xff
    s_add_u32 s{sFB}, s{sFB}, s{sT}
    s_mov_b32 s22, {2048*1024}
    s_mov_b32 s23, 0x00020000
    s_mov_b32 s26, {512*3072}
    s_mov_b32 s27, 0x00020000
    s_mov_b32 s30, {512*3584}
    s_mov_b32 s31, 0x00020000
    s_mov_b32 s34, {WS_SIZE}
    s_mov_b32 s35, 0x00020000
    s_mov_b32 s39, 0x00020000
    s_mov_b32 s42, 1024
    s_mov_b32 s43, 0x00020000
    s_mov_b32 s66, 256
    s_mov_b32 s67, 0x00020000
    s_mov_b32 s70, {2048*1024}
    s_mov_b32 s71, 0x00020000
    s_lshl_b32 s100, s{sRb}, 3
    s_add_u32 s100, s100, s{sG}
    s_cmp_lt_u32 s{sWave}, 4
    s_cbranch_scc1 L_comp
    """)
    sBand = 100
    srdsetup = """
    s_waitcnt lgkmcnt(0)
    s_mov_b32 s20, s4
    s_mov_b32 s21, s5
    s_mov_b32 s24, s6
    s_mov_b32 s25, s7
    s_mov_b32 s28, s44
    s_mov_b32 s29, s45
    s_mov_b32 s32, s62
    s_mov_b32 s33, s63
    s_mov_b32 s40, s52
    s_mov_b32 s41, s53
    s_mov_b32 s64, s60
    s_mov_b32 s65, s61
    s_mov_b32 s68, s54
    s_mov_b32 s69, s55
    """
    def get_token(L, vt):
        uid[0] += 1; u = uid[0]
        L(f"v_mov_b32 v{vt+2}, 0")
        L(f"s_mov_b32 s{sT4}, 0")
        L.label(f"L_tok{u}")
        L(f"""
        buffer_load_dwordx2 v[{vt}:{vt+1}], v{vt+2}, {DBG}, 0 offen sc1
        s_add_u32 s{sT4}, s{sT4}, 1
        s_waitcnt vmcnt(0)
        v_readfirstlane_b32 s{sTok}, v{vt}
        v_readfirstlane_b32 s{sTok+1}, v{vt+1}
        s_cmp_gt_u32 s{sT4}, {SPIN_MAX}
        s_cbranch_scc1 L_tokd{u}
        s_cmp_eq_u32 s{sTok}, 0
        s_cbranch_scc1 L_tok{u}
        """)
        L.label(f"L_tokd{u}")
    def token_issue(L, vt):
        L(f"v_mov_b32 v{vt+2}, 0")
        L(f"buffer_load_dwordx2 v[{vt}:{vt+1}], v{vt+2}, {DBG}, 0 offen sc1")
    def token_finish(L, vt, wait):
        uid[0] += 1; lab = f"L_tokok{uid[0]}"
        L(wait)
        L(f"v_readfirstlane_b32 s{sTok}, v{vt}")
        L(f"v_readfirstlane_b32 s{sTok+1}, v{vt+1}")
        L(f"s_cmp_lg_u32 s{sTok}, 0")
        L(f"s_cbranch_scc1 {lab}")
        get_token(L, vt)
        L.label(lab)
    def flag_store(vtok, voff0, soff):
        return ["s_mov_b64 exec, 1",
                f"buffer_store_dwordx2 v[{vtok}:{vtok+1}], v{voff0}, {WS}, s{soff} offen sc1",
                "s_mov_b64 exec, -1"]
    def flag_check(vtok, soff, block=False, stamp=None, cnt=0):
        uid[0] += 1; u = uid[0]
        if block: L = [f"s_cmp_eq_u32 s{sDone}, 0"]
        else:
            L = [f"s_getreg_b32 s{sGr}, hwreg(HW_REG_IB_STS)", f"s_and_b32 s{sGr}, s{sGr}, 0x00c0000f",
                 f"s_or_b32 s{sGr}, s{sGr}, s{sDone}", f"s_cmp_eq_u32 s{sGr}, 0"]
        L += [f"s_cbranch_scc1 L_fc{u}", f"L_fcr{u}:"]
        ool.label(f"L_fc{u}")
        ool(f"s_waitcnt vmcnt({cnt})")
        for x in flag_store(vtok, vtok + 2, soff): ool(x)
        ool(f"s_mov_b32 s{sDone}, 1")
        if stamp is not None and SP.on:
            ool(SP.line(stamp)); ool("s_waitcnt lgkmcnt(0)")
        ool(f"s_branch L_fcr{u}")
        return L
    def emit(L, x):
        if x is None: return
        if x.endswith(":"): L.label(x[:-1])
        else: L(x)
    def poll(L, regs, voffs, soff, mask=None, sleep=1):
        uid[0] += 1; u = uid[0]
        L(f"s_mov_b32 s{sT4}, 0")
        if mask: L(f"s_mov_b64 exec, {mask}")
        L.label(f"L_poll{u}")
        for vd, vo in zip(regs, voffs):
            L(f"buffer_load_dwordx2 v[{vd}:{vd+1}], v{vo}, {WS}, s{soff} offen sc1")
        L(f"s_add_u32 s{sT4}, s{sT4}, 1")
        L("s_waitcnt vmcnt(0)")
        L(f"v_cmp_ne_u64 vcc, s[{sTok}:{sTok+1}], v[{regs[0]}:{regs[0]+1}]")
        if len(regs) > 1:
            L(f"v_cmp_ne_u64 s[4:5], s[{sTok}:{sTok+1}], v[{regs[1]}:{regs[1]+1}]")
            L("s_nop 1")
            L("s_or_b64 vcc, vcc, s[4:5]")
        else: L("s_nop 1")
        L(f"s_cmp_gt_u32 s{sT4}, {SPIN_MAX}")
        L(f"s_cbranch_scc1 L_polld{u}")
        L(f"s_cbranch_vccz L_polld{u}")
        if sleep: L(f"s_sleep {sleep}")
        L(f"s_branch L_poll{u}")
        L.label(f"L_polld{u}")
        if mask: L("s_mov_b64 exec, -1")

    NSLOT = 5; SLOTB = 32768
    slot = lambda st: (st % NSLOT) * SLOTB
    XO, AO, BO = 0, 16384, 24576
    NE = 12
    KE, VE, QE = 65536, 65536 + NE * 1024, 65536 + 2 * NE * 1024
    KL, VL = 0, 98304
    GW = 65536 + 28672
    GO = 163840 - 64
    sHead = 56; sQb = 57; sKV = 58; sNb = 48
    sSA = 53; sSB = 54; sFl = 52; sFl2 = 49
    vHA = 108; vHB = 128
    attdec = f"""
    s_and_b32 s{sHead}, s2, 7
    s_lshl_b32 s{sHead}, s{sHead}, 2
    s_lshr_b32 s{sT}, s2, 3
    s_and_b32 s{sT2}, s{sT}, 3
    s_add_u32 s{sHead}, s{sHead}, s{sT2}
    s_lshr_b32 s{sNb}, s{sT}, 2
    s_lshl_b32 s{sQb}, s{sNb}, 3
    s_add_u32 s{sQb}, s{sQb}, s{sWave}
    s_lshl_b32 s{sKV}, s{sHead}, 17
    s_add_u32 s{sKV}, s{sKV}, {WS_KV}
    """
    l = Asm()
    sJ = 52; sM = 53; sSo = 54; sXb = 55; sAb = 56; sBb = 57; sFb = 58
    sJ4k, sJ2k, sJ1k, sJ8k = 96, 97, 98, 99
    sXc, sAc, sBc, sRot = 60, 61, 62, 63
    vXe = 4; vXo = 5; vQk = 6; vVs = 7; vFp = 8; vFs = 9; vR = 10
    vGW = 55; vGA = 56; vGx = 60; vGw = 76; vGa = 92; vGt = 20
    l(f"""
    v_lshrrev_b32 v{vR}, 3, v{vL}
    v_and_b32 v{vR+1}, 7, v{vL}
    v_lshrrev_b32 v{vR+2}, 4, v{vL}
    v_xor_b32 v{vR+3}, v{vR+1}, v{vR+2}
    v_lshlrev_b32 v{vR+3}, 4, v{vR+3}
    v_lshl_add_u32 v{vXe}, v{vR}, 10, v{vR+3}
    v_xor_b32 v{vXo}, 64, v{vXe}
    v_and_b32 v{vR+2}, 1, v{vR+2}
    v_lshlrev_b32 v{vR+2}, 2, v{vR+2}
    v_xor_b32 v{vR+3}, v{vR+1}, v{vR+2}
    v_lshlrev_b32 v{vR+3}, 4, v{vR+3}
    v_mul_u32_u24 v{vQk}, 3072, v{vR}
    v_add_u32 v{vQk}, v{vQk}, v{vR+3}
    v_mul_u32_u24 v{vFp}, 3584, v{vR}
    v_add_u32 v{vFp}, v{vFp}, v{vR+3}
    v_lshrrev_b32 v{vR}, 2, v{vL}
    v_and_b32 v{vR+1}, 3, v{vL}
    v_lshlrev_b32 v{vR+1}, 4, v{vR+1}
    v_mul_u32_u24 v{vVs}, 3072, v{vR}
    v_add_u32 v{vVs}, v{vVs}, v{vR+1}
    v_mul_u32_u24 v{vFs}, 3584, v{vR}
    v_add_u32 v{vFs}, v{vFs}, v{vR+1}
    v_lshlrev_b32 v{vR}, 4, v{vL}
    s_sub_u32 s{sBb}, s{sWave}, 4
    s_lshl_b32 s{sJ4k}, s{sBb}, 12
    s_lshl_b32 s{sJ2k}, s{sBb}, 11
    s_lshl_b32 s{sJ1k}, s{sBb}, 10
    s_lshl_b32 s{sJ8k}, s{sBb}, 13
    s_lshl_b32 s{sFb}, s{sRb}, 17
    s_lshl_b32 s{sT}, s{sBb}, 15
    s_add_u32 s{sFb}, s{sFb}, s{sT}
    s_lshl_b32 s{sAb}, s{sG}, 7
    s_mul_i32 s{sT}, s{sBb}, {16*3072}
    s_add_u32 s{sAb}, s{sAb}, s{sT}
    s_lshl_b32 s{sT2}, s{sOdd}, 10
    s_add_u32 s{sAb}, s{sAb}, s{sT2}
    s_lshl_b32 s{sBb}, s{sCg}, 6
    s_add_u32 s{sBb}, s{sBb}, 2048
    s_add_u32 s{sBb}, s{sBb}, s{sT}
    s_lshr_b32 s{sT3}, s{sCg}, 2
    s_lshl_b32 s{sT3}, s{sT3}, 1
    s_add_u32 s{sT3}, s{sT3}, s{sRb}
    """)
    l(srdsetup)
    l(f"""
    s_sub_u32 s{sJ}, s{sWave}, 4
    s_mov_b32 s{sXb}, s{sFb}
    s_and_b32 s{sRot}, s{sT3}, {0 if "norot" in exp else 7}
    """)
    def dma(L, vo, srd, m0base, m0j, src_sreg, src_add, sc=""):
        L(f"s_add_u32 s{sM}, s{m0j}, {m0base}")
        L(f"s_mov_b32 m0, s{sM}")
        L(f"s_add_u32 s{sSo}, s{src_sreg}, {src_add}")
        L(f"buffer_load_dwordx4 v{vo}, {srd}, s{sSo} offen{sc} lds")
    def stage_dma(L, st, odd):
        n = 0
        if st < 8:
            L(f"""
            s_add_u32 s{sT}, s{sRot}, {st}
            s_and_b32 s{sT}, s{sT}, 7
            s_lshl_b32 s{sXc}, s{sT}, 7
            s_add_u32 s{sXc}, s{sXc}, s{sXb}
            s_mul_i32 s{sT}, s{sT}, {64*3072}
            s_add_u32 s{sAc}, s{sAb}, s{sT}
            s_add_u32 s{sBc}, s{sBb}, s{sT}
            """)
            for i in range(4):
                dma(L, vXe if i % 2 == 0 else vXo, "s[20:23]", slot(st) + XO + i * 1024, sJ4k, sXc, i * 8192); n += 1
            for i in range(2):
                dma(L, vQk, "s[24:27]", slot(st) + AO + i * 1024, sJ2k, sAc, (i * 8) * 3072); n += 1
            dma(L, vVs, "s[24:27]", slot(st) + BO, sJ1k, sBc, 0); n += 1
        elif st < 10 or not odd:
            sF = sFA if st < 10 else sFB
            L(f"s_lshl_b32 s{sFb}, s{sF}, 6")
            L(f"s_add_u32 s{sT}, s{sJ}, s{sRot}")
            L(f"s_add_u32 s{sT}, s{sT}, {(st % 2) * 4}")
            L(f"s_and_b32 s{sT}, s{sT}, 7")
            L(f"s_mul_i32 s{sT}, s{sT}, {64*3584}")
            L(f"s_add_u32 s{sFb}, s{sFb}, s{sT}")
            for i in range(8):
                dma(L, vFp, "s[28:31]", slot(st) + i * 1024, sJ8k, sFb, (i * 8) * 3584); n += 1
        else:
            for hb in range(2):
                L(f"s_lshl_b32 s{sFb}, s{sFB}, 6")
                L(f"s_lshl_b32 s{sT}, s{sJ}, 1")
                L(f"s_add_u32 s{sT}, s{sT}, s{sRot}")
                L(f"s_add_u32 s{sT}, s{sT}, {hb}")
                L(f"s_and_b32 s{sT}, s{sT}, 7")
                L(f"s_mul_i32 s{sT}, s{sT}, {64*3584}")
                L(f"s_add_u32 s{sFb}, s{sFb}, s{sT}")
                for i in range(4):
                    dma(L, vFs, "s[28:31]", slot(st) + (hb * 4 + i) * 1024, sJ8k, sFb, i * 16 * 3584); n += 1
        return n
    RB = slot(11)
    vRo = 16; vRa = 17; vD = 24; vTk = 52
    bandsrd = f"""
    s_cmp_lt_u32 s{sBand}, 32
    s_cselect_b32 s36, s8, s46
    s_cselect_b32 s37, s9, s47
    s_mov_b32 s38, {1792*1024}
    s_cselect_b32 s38, {512*1024}, s38
    s_cselect_b32 s{sT}, 0, 32
    s_sub_u32 s{sT}, s{sBand}, s{sT}
    s_mov_b32 s4, s46
    s_mov_b32 s5, s47
    s_mov_b32 s6, {1792*1024}
    s_mov_b32 s7, 0x00020000
    """
    def relayout_issue(lo, vqo):
        lo(f"""
        v_lshrrev_b32 v{vGt}, 4, v{vL}
        v_lshlrev_b32 v{vGt}, 10, v{vGt}
        v_and_b32 v{vGt+1}, 15, v{vL}
        v_lshl_add_u32 v{vRo}, v{vGt+1}, 4, v{vGt}
        v_lshrrev_b32 v{vGt}, 5, v{vL}
        v_lshlrev_b32 v{vGt}, 10, v{vGt}
        v_bfe_u32 v{vGt+1}, v{vL}, 2, 2
        v_lshl_add_u32 v{vGt}, v{vGt+1}, 8, v{vGt}
        v_bfe_u32 v{vGt+1}, v{vL}, 4, 1
        v_lshl_add_u32 v{vGt}, v{vGt+1}, 5, v{vGt}
        v_and_b32 v{vGt+1}, 3, v{vL}
        v_lshl_add_u32 v{vRa}, v{vGt+1}, 3, v{vGt}
        s_add_u32 s{sT}, s{sJ4k}, {RB}
        v_add_u32 v{vRa}, s{sT}, v{vRa}
        """)
        lo(bandsrd)
        lo(f"""
        s_lshl_b32 s{sFb}, s{sT}, 14
        s_lshl_b32 s{sT}, s{sJ}, 8
        s_add_u32 s{sFb}, s{sFb}, s{sT}
        """)
        for i in range(4):
            dma(lo, vRo, "s[36:39]", RB + i * 1024, sJ4k, sFb, i * 4096); vqo.issue("band")
        lo(f"""
        s_add_u32 s{sT}, s{sBand}, 96
        s_lshl_b32 s{sFb}, s{sT}, 14
        s_lshl_b32 s{sT}, s{sJ}, 8
        s_add_u32 s{sFb}, s{sFb}, s{sT}
        """)
        for i in range(4):
            dma(lo, vRo, "s[4:7]", RB + 16384 + i * 1024, sJ4k, sFb, i * 4096); vqo.issue("band")
    vqc = Q("vmcnt", 63)
    INIT = P("ini", 2)
    for _ in range(stage_dma(l, 0, False)): vqc.issue(0)
    l(f"""
    s_lshl_b32 s{sT}, s{sJ}, 8
    s_add_u32 s{sM}, s{sT}, {GW}
    s_mov_b32 m0, s{sM}
    s_mov_b64 exec, 0xffff
    buffer_load_dwordx4 v{vR}, s[40:43], s{sT} offen lds
    s_mov_b64 exec, -1
    """)
    vqc.issue(0)
    for st in range(1, INIT):
        for _ in range(stage_dma(l, st, False)): vqc.issue(st)
    l(f"""
    s_cmp_lg_u32 s2, 0
    s_cbranch_scc1 L_notok
    s_cmp_lg_u32 s{sWave}, 4
    s_cbranch_scc1 L_notok
    s_memrealtime s[{sTok}:{sTok+1}]
    v_mov_b32 v{vTk+2}, 0
    s_waitcnt lgkmcnt(0)
    s_or_b32 s{sTok}, s{sTok}, 1
    v_mov_b32 v{vTk}, s{sTok}
    v_mov_b32 v{vTk+1}, s{sTok+1}
    s_mov_b64 exec, 1
    buffer_store_dwordx2 v[{vTk}:{vTk+1}], v{vTk+2}, {DBG}, 0 offen sc1
    s_mov_b64 exec, -1
    s_waitcnt vmcnt(0)
    """)
    l.label("L_notok")
    l(f"""
    v_and_b32 v{vGt}, 31, v{vL}
    v_lshlrev_b32 v{vGt}, 7, v{vGt}
    v_add_u32 v{vGt}, s{sJ4k}, v{vGt}
    v_lshrrev_b32 v{vGt+1}, 5, v{vL}
    v_bfe_u32 v{vGt+2}, v{vL}, 1, 3
    v_lshlrev_b32 v{vGW}, 4, v{vGt+1}
    v_add_u32 v{vGW}, {GW}, v{vGW}
    """)
    for s in range(4):
        l(f"v_or_b32 v{vGt+3}, {2*s}, v{vGt+1}")
        l(f"v_xor_b32 v{vGt+3}, v{vGt+3}, v{vGt+2}")
        l(f"v_lshl_add_u32 v{vGA+s}, v{vGt+3}, 4, v{vGt}")
    def gate_block(L, st):
        uid[0] += 1; u = uid[0]
        L(f"s_cmp_lg_u32 s{sCg}, 1")
        L(f"s_cbranch_scc1 L_ng{u}")
        L(f"s_add_u32 s{sT}, s{sRot}, {st}")
        L(f"s_and_b32 s{sT}, s{sT}, 7")
        L(f"s_lshl_b32 s{sT}, s{sT}, 7")
        L(f"v_add_u32 v{vGt}, s{sT}, v{vGW}")
        for s in range(4):
            L(f"v_add_u32 v{vGt+1}, {slot(st)+XO}, v{vGA+s}")
            L(f"ds_read_b128 {vr(vGx+4*s,4)}, v{vGt+1}")
            L(f"ds_read_b128 {vr(vGw+4*s,4)}, v{vGt} offset:{s*32}")
        for s in range(4):
            L(f"s_waitcnt lgkmcnt({6-2*s})")
            cc = "0" if (st == 0 and s == 0) else vr(vGa, 16)
            L(f"v_mfma_f32_32x32x16_bf16 {vr(vGa,16)}, {vr(vGw+4*s,4)}, {vr(vGx+4*s,4)}, {cc}")
        if st == 7:
            L(f"""
            s_mov_b32 s{sT3}, {f32(-1.4426950408889634)}
            s_lshl_b32 s{sT}, s{sRb}, 2
            s_add_u32 s{sT}, s{sT}, s{sJ}
            s_lshl_b32 s{sT}, s{sT}, 7
            s_add_u32 s{sT}, s{sT}, {WS_G}
            v_lshlrev_b32 v{vGt+1}, 2, v{vL}
            s_nop 7
            v_mul_f32 v{vGt}, s{sT3}, v{vGa}
            v_exp_f32 v{vGt}, v{vGt}
            s_nop 0
            v_add_f32 v{vGt}, 1.0, v{vGt}
            v_rcp_f32 v{vGt}, v{vGt}
            s_mov_b64 exec, 0xffffffff
            buffer_store_dword v{vGt}, v{vGt+1}, {WS}, s{sT} offen{SC}
            s_mov_b64 exec, -1
            """)
        L.label(f"L_ng{u}")
    def loader_seq(L, odd, vq, first, last):
        nst = 11 if odd else 12
        for st in range(first, last + 1):
            L(vq.need({st}))
            if FS and st in (0, 2, 4, 7): SP.st(L, {0: 4, 2: 5, 4: 6, 7: 7}[st])
            L("s_barrier")
            for nx in ((2, 3) if st == 0 else (st + 3,)):
                if INIT <= nx < nst:
                    for _ in range(stage_dma(L, nx, odd)): vq.issue(nx)
            if st == 5:
                token_issue(L, vTk); vq.issue("tok")
            if odd and st == 8: relayout_issue(L, vq)
            if st < 8 and (odd or st < 7):
                if FS and SP.on: L("s_waitcnt lgkmcnt(0)")
                gate_block(L, st)
    loader_seq(l, False, vqc, 0, 6)
    l(f"s_cmp_lg_u32 s{sOdd}, 0")
    l("s_cbranch_scc1 L_lodd")
    def loader_tail(L, odd):
        vq = vqc.copy()
        loader_seq(L, odd, vq, 7, 9)
        L(vq.drain())
        if odd:
            for b in range(2):
                base = (vHA, vHB)[b]
                for n in range(4):
                    L(f"ds_read_b64_tr_b16 {vr(base+4*n,2)}, v{vRa} offset:{b*16384+n*64}")
                    L(f"ds_read_b64_tr_b16 {vr(base+4*n+2,2)}, v{vRa} offset:{b*16384+n*64+2048}")
                L("s_waitcnt lgkmcnt(0)")
        L("s_barrier")
        SP.st(L, 1)
        token_finish(L, vTk, None)
        L(attdec)
        L(f"v_mov_b32 v{vGt+2}, {GO}")
        L("s_barrier")
        if odd:
            L(f"s_cmp_lg_u32 s{sCg}, 1")
            L("s_cbranch_scc1 L_nofg")
            L(f"""
            s_lshl_b32 s{sT}, s{sRb}, 2
            s_add_u32 s{sT}, s{sT}, s{sJ}
            s_lshl_b32 s{sT}, s{sT}, 7
            s_add_u32 s{sT}, s{sT}, {FG}
            """)
            for x in flag_store(vTk, vTk + 2, sT): L(x)
            L.label("L_nofg")
        uid[0] += 1; u = uid[0]
        L(f"s_cmp_lg_u32 s{sJ}, 0")
        L(f"s_cbranch_scc1 L_np{u}")
        L(f"""
        s_lshr_b32 s{sT}, s{sHead}, 2
        s_lshl_b32 s{sT}, s{sT}, 14
        s_add_u32 s{sT3}, s{sT}, {FQ}
        v_lshlrev_b32 v{vGt}, 7, v{vL}
        v_add_u32 v{vGt+1}, 8192, v{vGt}
        """)
        poll(L, [vD, vD + 2], [vGt, vGt + 1], sT3)
        L(f"ds_write_b64 v{vGt+2}, v[{vTk}:{vTk+1}]")
        SP.st(L, 2)
        L(f"""
        s_lshl_b32 s{sSo}, s{sHead}, 16
        s_lshl_b32 s{sT}, s{sNb}, 13
        s_add_u32 s{sSo}, s{sSo}, s{sT}
        """)
        def grp(ldsb, sadd):
            L(f"s_mov_b32 m0, {ldsb}")
            L(sadd)
            for j in range(4):
                L(f"buffer_load_dwordx4 v{vR}, {WS}, s{sSo} offen offset:{j*1024} sc1 lds")
        grp(QE, "s_nop 0")
        grp(QE + 4096, f"s_add_u32 s{sSo}, s{sSo}, 4096")
        for q in range(NE // 4):
            grp(KE + q * 4096, f"s_add_u32 s{sSo}, s{sKV}, {q*4096}")
            grp(VE + q * 4096, f"s_add_u32 s{sSo}, s{sKV}, {65536+q*4096}")
        L("s_waitcnt vmcnt(0)")
        L(f"s_branch L_nq{u}")
        L.label(f"L_np{u}")
        L(f"s_mov_b32 s{sT4}, 0")
        L.label(f"L_go{u}")
        L(f"""
        s_sleep 1
        ds_read_b64 v[{vD}:{vD+1}], v{vGt+2}
        s_add_u32 s{sT4}, s{sT4}, 1
        s_waitcnt lgkmcnt(0)
        v_cmp_ne_u64 vcc, s[{sTok}:{sTok+1}], v[{vD}:{vD+1}]
        s_cmp_gt_u32 s{sT4}, {SPIN_MAX * 16}
        s_cbranch_scc1 L_god{u}
        s_cbranch_vccnz L_go{u}
        """)
        L.label(f"L_god{u}")
        L(f"""
        s_sub_u32 s{sT}, s{sJ}, 1
        s_lshl_b32 s{sT}, s{sT}, 14
        s_add_u32 s{sM}, s{sT}, {VL}
        s_add_u32 s{sSo}, s{sKV}, s{sT}
        s_add_u32 s{sSo}, s{sSo}, {65536 + NE*1024}
        """)
        for q in range(5):
            if q == 4:
                L(f"s_cmp_lg_u32 s{sJ}, 3")
                L(f"s_cbranch_scc1 L_nq{u}")
            L(f"s_mov_b32 m0, s{sM}")
            L(f"s_add_u32 s{sM}, s{sM}, 4096")
            for j in range(4):
                L(f"buffer_load_dwordx4 v{vR}, {WS}, s{sSo} offen offset:{j*1024} sc1 lds")
            L(f"s_add_u32 s{sSo}, s{sSo}, 4096")
        L.label(f"L_nq{u}")
        if odd:
            L(f"""
            s_mul_i32 s{sT}, s{sJ}, {4*144*1024}
            s_lshl_b32 s{sT2}, s{sBand}, 10
            s_add_u32 s{sT}, s{sT}, s{sT2}
            s_add_u32 s{sSA}, s{sT}, {WS_W}
            s_add_u32 s{sSB}, s{sSA}, {128*1024}
            s_lshl_b32 s{sT}, s{sJ}, 14
            s_lshl_b32 s{sT2}, s{sBand}, 7
            s_add_u32 s{sFl2}, s{sT}, s{sT2}
            s_add_u32 s{sFl2}, s{sFl2}, {FW}
            """)
        L(f"s_mov_b32 s{sDone}, {0 if odd else 1}")
        L("s_branch L_attL")
    le = Asm(); loader_tail(le, False)
    lo = Asm(); lo.label("L_lodd"); loader_tail(lo, True)
    vL16 = 3; vXA = 4; vPA = 8; vSA = 10; vVO = 11; vT = 1
    vE = 12; vPk = 20
    NW = 8
    vW = [28 + 4 * i for i in range(NW)]
    vAcc = [60, 76, 92, 108]
    vCt = 124
    vX = 128
    c = Asm()
    c.label("L_comp")
    c(f"""
    v_lshlrev_b32 v{vL16}, 4, v{vL}
    s_lshl_b32 s{sTT}, s{sRb}, 2
    s_add_u32 s{sTT}, s{sTT}, s{sWave}
    v_and_b32 v{vT}, 31, v{vL}
    v_lshlrev_b32 v{vE}, 7, v{vT}
    s_lshl_b32 s{sT}, s{sWave}, 12
    v_add_u32 v{vE}, s{sT}, v{vE}
    v_lshrrev_b32 v{vE+1}, 5, v{vL}
    v_bfe_u32 v{vE+2}, v{vL}, 1, 3
    """)
    for s in range(4):
        c(f"v_or_b32 v{vE+3}, {2*s}, v{vE+1}")
        c(f"v_xor_b32 v{vE+3}, v{vE+3}, v{vE+2}")
        c(f"v_lshl_add_u32 v{vXA+s}, v{vE+3}, 4, v{vE}")
    c(f"""
    v_bfe_u32 v{vE}, v{vL}, 4, 1
    v_lshlrev_b32 v{vE}, 5, v{vE}
    v_and_b32 v{vE+1}, 3, v{vL}
    v_lshl_add_u32 v{vE}, v{vE+1}, 3, v{vE}
    v_lshrrev_b32 v{vE+1}, 5, v{vL}
    v_lshlrev_b32 v{vE+1}, 3, v{vE+1}
    v_bfe_u32 v{vE+2}, v{vL}, 2, 2
    v_add_u32 v{vE+1}, v{vE+1}, v{vE+2}
    v_lshl_add_u32 v{vSA}, v{vE+1}, 6, v{vE}
    v_lshl_add_u32 v{vPA}, v{vE+1}, 7, v{vE}
    v_bfe_u32 v{vE+2}, v{vL}, 3, 1
    v_lshl_add_u32 v{vPA}, v{vE+2}, 6, v{vPA}
    v_xor_b32 v{vPA+1}, 64, v{vPA}
    v_bfe_u32 v{vE}, v{vL}, 4, 1
    v_lshlrev_b32 v{vE}, 17, v{vE}
    v_lshrrev_b32 v{vE+1}, 5, v{vL}
    v_lshl_add_u32 v{vE}, v{vE+1}, 8, v{vE}
    v_and_b32 v{vE+1}, 15, v{vL}
    v_lshl_add_u32 v{vVO}, v{vE+1}, 4, v{vE}
    v_mov_b32 v{vPk}, -1
    v_mov_b32 v{vPk+1}, -1
    v_mov_b32 v{vPk+2}, -1
    v_mov_b32 v{vPk+3}, -1
    s_lshl_b32 s{sT}, s{sTT}, 15
    s_lshl_b32 s{sT2}, s{sCg}, 11
    s_add_u32 s{sT}, s{sT}, s{sT2}
    s_add_u32 s{sT3}, s{sT}, {WS_O}
    s_mov_b32 s{sDone}, 0
    """)
    c(srdsetup)
    poison = f"""
    buffer_store_dwordx4 {vr(vPk,4)}, v{vL16}, {WS}, s{sT3} offen{SC}
    buffer_store_dwordx4 {vr(vPk,4)}, v{vL16}, {WS}, s{sT3} offen offset:1024{SC}
    """
    c(poison)
    c(f"""
    s_lshl_b32 s{sFl}, s{sG}, 14
    s_lshl_b32 s{sT}, s{sRb}, 10
    s_add_u32 s{sFl}, s{sFl}, s{sT}
    s_lshl_b32 s{sT}, s{sOdd}, 9
    s_add_u32 s{sFl}, s{sFl}, s{sT}
    s_lshl_b32 s{sT}, s{sWave}, 7
    s_add_u32 s{sFl}, s{sFl}, s{sT}
    s_add_u32 s{sFl}, s{sFl}, {FQ}
    s_lshl_b32 s{sFl2}, s{sTT}, 11
    s_lshl_b32 s{sT}, s{sCg}, 7
    s_add_u32 s{sFl2}, s{sFl2}, s{sT}
    s_add_u32 s{sFl2}, s{sFl2}, {FH}
    """)
    c(f"""
    s_lshl_b32 s53, s{sCg}, 18
    s_lshl_b32 s{sT2}, s{sTT}, 10
    s_add_u32 s53, s53, s{sT2}
    s_add_u32 s53, s53, {WS_KV + 65536}
    s_add_u32 s{sT}, s{sOdd}, 18
    s_lshl_b32 s54, s{sG}, s{sT}
    s_add_u32 s54, s54, s{sT2}
    s_mul_i32 s{sT}, s{sOdd}, {WS_KV}
    s_add_u32 s54, s54, s{sT}
    s_add_u32 s{sT}, s{sOdd}, 16
    s_lshl_b32 s55, 1, s{sT}
    """)
    pf_w1 = f"""
    s_lshr_b32 s{sT}, s2, 3
    s_lshl_b32 s{sT}, s{sT}, 2
    s_add_u32 s{sT}, s{sT}, s{sWave}
    v_lshrrev_b32 v{vE+2}, 3, v{vL}
    v_mul_u32_u24 v{vE+3}, 3584, v{vE+2}
    v_and_b32 v{vE+4}, 7, v{vL}
    v_lshl_add_u32 v{vE+3}, v{vE+4}, 7, v{vE+3}
    s_mul_i32 s{sT2}, s{sT}, {4*3584}
    s_lshr_b32 s{sT3}, s{sCg}, 2
    s_mul_i32 s{sT3}, s{sT3}, 896
    s_add_u32 s{sT2}, s{sT2}, s{sT3}
    s_mov_b64 exec, 0x7f7f7f7f
    buffer_load_dword v{vE+6}, v{vE+3}, s[28:31], s{sT2} offen
    s_mov_b64 exec, -1
    """
    pf_band = bandsrd + f"""
    v_lshrrev_b32 v{vE+2}, 1, v{vL}
    v_lshlrev_b32 v{vE+2}, 10, v{vE+2}
    v_and_b32 v{vE+4}, 1, v{vL}
    v_lshl_add_u32 v{vE+2}, v{vE+4}, 7, v{vE+2}
    s_add_u32 s{sT2}, s{sBand}, 96
    s_cmp_lg_u32 s{sOdd}, 0
    s_cselect_b32 s36, s4, s36
    s_cselect_b32 s37, s5, s37
    s_cselect_b32 s38, s6, s38
    s_cselect_b32 s{sT}, s{sT2}, s{sT}
    s_lshl_b32 s{sT}, s{sT}, 14
    s_lshl_b32 s{sT2}, s{sWave}, 8
    s_add_u32 s{sT}, s{sT}, s{sT2}
    s_mov_b64 exec, 0xffffffff
    buffer_load_dword v{vE+7}, v{vE+2}, s[36:39], s{sT} offen
    s_mov_b64 exec, -1
    """
    addr_regs = [vXA, vXA + 1, vXA + 2, vXA + 3, vPA, vPA + 1, vSA]
    PD = 6
    def silu_ep(acc, dst):
        f = [f"s_mov_b32 s{sT3}, {f32(-1.4426950408889634)}"]
        for h in range(2):
            for j in range(8): f.append(f"v_mul_f32 v{vE+j}, s{sT3}, v{acc+8*h+j}")
            for j in range(8): f.append(f"v_exp_f32 v{vE+j}, v{vE+j}")
            for j in range(8): f.append(f"v_add_f32 v{vE+j}, 1.0, v{vE+j}")
            for j in range(8): f.append(f"v_rcp_f32 v{vE+j}, v{vE+j}")
            for j in range(8): f.append(f"v_mul_f32 v{acc+8*h+j}, v{acc+8*h+j}, v{vE+j}")
        for j in range(8): f.append(f"v_cvt_pk_bf16_f32 v{dst+j}, v{acc+2*j}, v{acc+2*j+1}")
        return f
    class CS: pass
    S = CS()
    def lds_addr(out, reg, byte):
        w = S.win[reg]
        if not (0 <= byte - w <= 65535 - 512):
            nw_ = (byte // 32768) * 32768
            out.append(f"v_add_u32 v{reg}, {nw_ - w}, v{reg}" if nw_ - w >= 0 else f"v_subrev_u32 v{reg}, {w - nw_}, v{reg}")
            S.win[reg] = nw_; w = nw_
        return byte - w
    def units(odd):
        U = []
        for st in range(8):
            for s in range(4):
                ks = st * 4 + s
                U.append(dict(st=st, ks=ks, acc=2, kind="single", base=slot(st) + BO + s * 1024, swap=True, x=True))
                for nt in range(2):
                    U.append(dict(st=st, ks=ks, acc=nt, kind="pair", nt=nt, base=slot(st) + AO + s * 2048))
        p2 = [3, 2, 0, 1]
        for t in range(3 if odd else 4):
            for ks in range(32):
                if odd and t == 2:
                    U.append(dict(st=10, ks=ks, acc=p2[t], kind="single", base=slot(10) + ks * 1024))
                else:
                    st = 8 + 2 * (t // 2) + ks // 16
                    U.append(dict(st=min(st, 10), ks=ks, acc=p2[t], kind="pair", nt=t % 2, base=slot(st) + (ks % 16) * 2048))
        for i, u in enumerate(U): u["i"] = i
        return U
    QF0, QFS = P("qa", 16), P("qs", 4)
    fchk = {}
    def emit_read(out, u):
        b = u["st"]
        if b not in S.bd:
            if b == 10: out += fchk["block"]
            out.append("s_barrier"); S.bd.add(b)
        if u.get("x"):
            s = u["ks"] % 4
            off = lds_addr(out, vXA + s, slot(u["st"]) + XO)
            out.append(f"ds_read_b128 {vr(vX+4*u['ks'],4)}, v{vXA+s} offset:{off}")
            S.lq.issue(("x", u["ks"]))
        w = vW[u["i"] % NW]
        r, d = (vPA + u["nt"], 512) if u["kind"] == "pair" else (vSA, 256)
        off = lds_addr(out, r, u["base"])
        out.append(f"ds_read_b64_tr_b16 {vr(w,2)}, v{r} offset:{off}"); S.lq.issue(("w", u["i"]))
        out.append(f"ds_read_b64_tr_b16 {vr(w+2,2)}, v{r} offset:{off+d}"); S.lq.issue(("w", u["i"]))
    def group(u, U):
        g = []
        tags = {("w", u["i"]), ("x", u["ks"])} if u["i"] < 96 else {("w", u["i"])}
        if u["i"] % 2 == 0 and u["i"] + 1 < len(U): tags.add(("w", u["i"] + 1))
        w = S.lq.need(tags)
        if w: g.append(w)
        acc = vAcc[u["acc"]]; cc = "0" if u["ks"] == 0 else vr(acc, 16)
        wr = vr(vW[u["i"] % NW], 4); xr = vr(vX + 4 * u["ks"], 4)
        A, B = (xr, wr) if u.get("swap") else (wr, xr)
        g.append(f"v_mfma_f32_32x32x16_bf16 {vr(acc,16)}, {A}, {B}, {cc}")
        if u["i"] + PD < len(U): emit_read(g, U[u["i"] + PD])
        return g
    lines = lambda s: [x.strip() for x in s.strip("\n").split("\n")]
    tokA = Asm(); token_issue(tokA, vCt)
    tokB = Asm(); token_finish(tokB, vCt, "s_waitcnt vmcnt(0)")
    for k in range(QF0, 58, QFS): fchk[k] = flag_check(vCt, sFl, stamp=(5 if FS else None))
    def front(odd):
        U = units(odd)
        fchk["block"] = flag_check(vCt, sFl, block=True, stamp=(5 if FS else None))
        S.win = {r: 0 for r in addr_regs}; S.lq = Q("lgkmcnt", 15); S.bd = set()
        pre = []
        for i in range(PD): emit_read(pre, U[i])
        G = []
        for u in U:
            g = group(u, U); i = u["i"]
            if "noc" in exp and i < 90: g = [x for x in g if "s_barrier" in x or x.startswith("v_add") or x.startswith("v_subrev")]
            if "nom" in exp and i < 90: g = [x for x in g if "mfma" not in x]
            if i == P("pw", 12) and "nopw" not in exp: g += lines(pf_w1)
            if i == P("pb", 40) and "nopb" not in exp: g += lines(pf_band)
            if i == 60: g += [x.strip() for x in tokA.lines]
            if i == 92: g += [x.strip() for x in tokB.lines]
            if i == 95 and SP.on: g += [SP.line(1), S.lq.drain()]
            G.append(g)
        G[0] = pre + G[0]
        a2 = vAcc[2]
        f = [f"s_cmp_lg_u32 s{sOdd}, 0", f"s_cselect_b32 s{sT3}, 1.0, {f32(QSCALE)}"]
        for j in range(8): f.append(f"v_cvt_pk_bf16_f32 v{a2+j}, v{a2+2*j}, v{a2+2*j+1}")
        f += [f"buffer_store_dwordx4 {vr(a2,4)}, v{vVO}, {WS}, s53 offen{SC}",
              f"buffer_store_dwordx4 {vr(a2+4,4)}, v{vVO}, {WS}, s53 offen offset:512{SC}"]
        for tq in range(2):
            acc = vAcc[tq]; pk = vPk if tq == 0 else vE
            for j in range(16): f.append(f"v_mul_f32 v{acc+j}, s{sT3}, v{acc+j}")
            for j in range(8): f.append(f"v_cvt_pk_bf16_f32 v{pk+j}, v{acc+2*j}, v{acc+2*j+1}")
            f.append(f"buffer_store_dwordx4 {vr(pk,4)}, v{vL16}, {WS}, s54 offen{SC}")
            f.append("s_add_u32 s54, s54, s55")
            f.append(f"buffer_store_dwordx4 {vr(pk+4,4)}, v{vL16}, {WS}, s54 offen{SC}")
            f.append("s_add_u32 s54, s54, s55")
        if FS and SP.on: f += [SP.line(4), "s_waitcnt lgkmcnt(0)"]
        spread(G, f, 96 + 2, 96 + 9)
        spread(G, silu_ep(vAcc[3], vHA), 96 + 35, 96 + 57)
        spread(G, silu_ep(vAcc[2], vHA + 8), 96 + 67, 96 + 95)
        if not odd: spread(G, silu_ep(vAcc[0], vHB), 96 + 99, 96 + 127)
        for k in range(QF0, 58, QFS): G[96 + k] += fchk[k]
        G[96 + 63].append("s_barrier")
        return G
    Ge = front(False); Go = front(True)
    ncom = 0
    while Ge[ncom] == Go[ncom]: ncom += 1
    for g in Ge[:ncom]:
        for x in g: emit(c, x)
    c(f"s_cmp_lg_u32 s{sOdd}, 0")
    c("s_cbranch_scc1 L_codd")
    hdst = f"""
    s_mul_i32 s{sT}, s{sTT}, {112*1024}
    s_add_u32 s{sT}, s{sT}, {WS_H}
    s_lshl_b32 s{sSA}, s{sFA}, 11
    s_add_u32 s{sSA}, s{sSA}, s{sT}
    s_lshl_b32 s{sSB}, s{sFB}, 11
    s_add_u32 s{sSB}, s{sSB}, s{sT}
    s_mov_b32 s{sDone}, 0
    """
    ce = Asm()
    for g in Ge[ncom:]:
        for x in g: emit(ce, x)
    HE = "he" in exp
    def hst(L, base, sreg, off, n=2):
        for q in range(n): L(f"buffer_store_dwordx4 {vr(base+4*q,4)}, v{vL16}, {WS}, s{sreg} offen offset:{off+q*1024}{SC}")
    SP.st(ce, 2)
    ce(attdec); ce(hdst)
    if HE: hst(ce, vHA, sSA, 0, 4); hst(ce, vHB, sSB, 0)
    for x in silu_ep(vAcc[1], vHB + 8): ce(x)
    if HE: hst(ce, vHB + 8, sSB, 2048)
    ce("s_branch L_attC")
    co = Asm()
    co.label("L_codd")
    for g in Go[ncom:]:
        for x in g: emit(co, x)
    SP.st(co, 2)
    co(attdec); co(hdst)
    if HE: hst(co, vHA, sSA, 0, 4)
    for x in silu_ep(vAcc[0], vHB): co(x)
    if HE: hst(co, vHB, sSB, 0)
    vL16 = 1; vKA = 4; vVA = 3; vT = 5; vT2 = 6; vM = 7
    vQ = 8; vK = [12, 16]; vV = [[20, 24], [28, 32]]; vP = 36; vS = [60, 76]; vO = 92
    vFA = 108; NFB = 4
    vFB = [44, 152, 164, 140]
    vWo = 176
    vGq = 240; vGf = 241; vTk2 = 242
    vPl = 246; vPo = 252; vVB = 253
    sVM = 30; sW0 = 24; sW1 = 25; sH = 26; sD = 27; sWo = 28
    sLK = 20; sSK = 21; sX = 22
    NT = 64
    N1 = 52
    B1, B2 = NE - 2, 46
    PI, PT, F0 = P("pi", 20), P("pt", 22), P("fz", 25)
    setup = f"""
    v_lshlrev_b32 v{vL16}, 4, v{vL}
    v_mov_b32 v{vTk2}, s{sTok}
    v_mov_b32 v{vTk2+1}, s{sTok+1}
    v_mov_b32 v{vTk2+2}, 0
    s_lshr_b32 s{sD}, s{sWave}, 1
    s_mul_i32 s{sT3}, s{sD}, {28*1024}
    s_mul_i32 s{sW0}, s{sNb}, {2*144*1024}
    s_add_u32 s{sW0}, s{sW0}, {WS_W}
    s_lshl_b32 s{sT}, s{sD}, 13
    s_add_u32 s{sWo}, s{sW0}, s{sT}
    s_add_u32 s{sW0}, s{sW0}, s{sT3}
    s_add_u32 s{sW0}, s{sW0}, {32*1024}
    s_add_u32 s{sW1}, s{sW0}, {144*1024}
    s_lshl_b32 s{sH}, s{sHead}, 1
    s_and_b32 s{sT2}, s{sWave}, 1
    s_add_u32 s{sTT}, s{sH}, s{sT2}
    s_mul_i32 s{sH}, s{sTT}, {112*1024}
    s_add_u32 s{sH}, s{sH}, s{sT3}
    s_add_u32 s{sH}, s{sH}, {WS_H}
    v_add_u32 v{vKA}, {KE}, v{vL16}
    v_and_b32 v{vT}, 15, v{vL}
    v_lshlrev_b32 v{vT}, 4, v{vT}
    v_and_b32 v{vT2}, 32, v{vL}
    v_lshlrev_b32 v{vT2}, 3, v{vT2}
    v_add_u32 v{vVA}, v{vT}, v{vT2}
    v_add_u32 v{vVB}, {VL}, v{vVA}
    v_add_u32 v{vVA}, {VE}, v{vVA}
    s_mov_b32 s{sVM}, 0x0000ffff
    s_mov_b32 s{sVM+1}, 0x0000ffff
    s_mov_b32 s{sT}, 0x3f803f80
    v_and_b32 v{vT}, 27, v{vL}
    v_cmp_eq_u32 vcc, 16, v{vT}
    v_mov_b32 v{vT2}, s{sT}
    s_lshl_b32 s{sT}, s{sWave}, 10
    v_cndmask_b32 v{vT}, 0, v{vT2}, vcc
    v_add_u32 v{vT2}, s{sT}, v{vKA}
    """ + "".join(f"v_mov_b32 v{vV[b][g]+j}, v{vT}\n" for b in range(2) for g in range(2) for j in range(4))
    pofs = f"""
    s_lshr_b32 s{sT}, s{sNb}, 1
    s_lshl_b32 s{sT}, s{sT}, 14
    s_add_u32 s{sT}, s{sT}, {FW - WS_F}
    s_mul_i32 s{sT2}, s{sD}, 28
    s_add_u32 s{sT2}, s{sT2}, 32
    v_add_u32 v{vPo}, s{sT2}, v{vL}
    v_and_b32 v{vPo}, 127, v{vPo}
    v_lshlrev_b32 v{vPo}, 7, v{vPo}
    v_add_u32 v{vPo}, s{sT}, v{vPo}
    v_lshlrev_b32 v{vM}, 7, v{vL}
    s_lshl_b32 s{sT2}, s{sD}, 10
    s_add_u32 s{sT}, s{sT}, s{sT2}
    s_sub_u32 s{sT}, s{sT}, {28*128}
    s_mov_b32 exec_lo, 0xf0000000
    s_mov_b32 exec_hi, 0x0000000f
    v_add_u32 v{vPo}, s{sT}, v{vM}
    s_lshl_b32 s{sT}, s{sTT}, 11
    s_add_u32 s{sT}, s{sT}, {FH - WS_F - 36*128}
    s_mov_b32 exec_lo, 0
    s_mov_b32 exec_hi, 0x000ffff0
    v_add_u32 v{vPo}, s{sT}, v{vM}
    s_mov_b64 exec, -1
    s_lshl_b32 s{sT}, s{sTT}, 7
    s_add_u32 s{sT}, s{sT}, {FG - WS_F}
    v_writelane_b32 v{vPo}, s{sT}, 52
    s_lshl_b32 s{sT}, s{sQb}, 7
    s_add_u32 s{sT}, s{sT}, {FG - WS_F}
    v_writelane_b32 v{vPo}, s{sT}, 53
    """
    class TS: pass
    X = TS()
    def readK(t, i):
        if i < NE: t(f"ds_read_b128 {vr(vK[i%2],4)}, v{vKA} offset:{i*1024}")
        else: t(f"ds_read_b128 {vr(vK[i%2],4)}, v{vL16} offset:{KL+(i-NE)*1024}")
        X.lq.issue(("k", i))
    def readV(t, i):
        r, o = (vVA, i * 1024) if i < NE else (vVB, (i - NE) * 1024)
        t(f"s_mov_b64 exec, s[{sVM}:{sVM+1}]")
        t(f"ds_read_b128 {vr(vV[i%2][0],4)}, v{r} offset:{o}"); X.lq.issue(("v", i, 0))
        t(f"ds_read_b128 {vr(vV[i%2][1],4)}, v{r} offset:{o+512}"); X.lq.issue(("v", i, 1))
        t(f"s_mov_b64 exec, -1")
    def mS(t, i):
        t(X.lq.need({("k", i), "q"}))
        t(f"v_mfma_f32_32x32x16_bf16 {vr(vS[i%2],16)}, {vr(vK[i%2],4)}, {vr(vQ,4)}, 0")
    def mPV(t, i, g, first=False):
        t(X.lq.need({("v", i, g)}))
        cc = "0" if first else vr(vO, 16)
        t(f"v_mfma_f32_32x32x16_bf16 {vr(vO,16)}, {vr(vV[i%2][g],4)}, {vr(vP+4*g,4)}, {cc}")
    ntile = NT - F0
    fs = [0] * NT
    for n in range(56): fs[F0 + n * ntile // 56] += 1
    assert max(fs) <= 2
    floads = [(j, w) for j in range(28) for w in (0, 2, 1)]
    def fload(t, j, which):
        b = vFB[j % NFB] + 4 * which
        s = (sW0, sW1, sH)[which]
        if "xl0" in exp or ("xl2" in exp and which == 1): return
        t(f"buffer_load_dwordx4 {vr(b,4)}, v{vL16}, {WS}, s{s} offen offset:{(j%4)*1024} sc1")
        if j % 4 == 3: t(f"s_add_u32 s{s}, s{s}, 4096")
        X.vq.issue(("f", j, which))
    def emit_floads(t, k):
        for _ in range(k):
            if X.nfl >= len(floads): return
            j, w = floads[X.nfl]
            if j >= NFB and X.nf < 2 * (j - NFB) + (1 if w == 0 else 2): return
            fload(t, j, w); X.nfl += 1
    def fmfma(t):
        n = X.nf; j, i = n // 2, n % 2
        t(X.vq.need({("f", j, i), ("f", j, 2)}))
        b = vFB[j % NFB]
        cc = "0" if j == 0 else vr(vFA + 16 * i, 16)
        if "xm" not in exp: t(f"v_mfma_f32_32x32x16_bf16 {vr(vFA+16*i,16)}, {vr(b+4*i,4)}, {vr(b+8,4)}, {cc}")
        X.nf += 1
    def woload(t, k):
        if k == 8: t(f"s_add_u32 s{sWo}, s{sWo}, {144*1024 - 8192}")
        t(f"buffer_load_dwordx4 {vr(vWo+4*k,4)}, v{vL16}, {WS}, s{sWo} offen offset:{(k%4)*1024} sc1")
        if k % 4 == 3: t(f"s_add_u32 s{sWo}, s{sWo}, 4096")
        X.vq.issue("wo")
    pr = {0: 3, 6: 2, 8: 1, 9: 0, B1: 3, P("pa", 42): 2, P("pb2_", 56): 1, P("pc", 62): 0}
    WO0 = P("wo", 28)
    prC = dict(pr); prL = dict(pr)
    if "pl" in exp:
        for k in (0, 6, 8, 9): del prC[k]; del prL[k]
        prC.update({0: 1, 7: 0}); prL.update({0: 3, 5: 2, 7: 1, 9: 0})
    def tile(t, i, hook, pr=pr):
        Sx = vS[i % 2]
        E = lambda j: t(f"v_exp_f32 v{Sx+j}, v{Sx+j}")
        C = lambda j: t(f"v_cvt_pk_bf16_f32 v{vP+j}, v{Sx+2*j}, v{Sx+2*j+1}")
        if i in pr: t(f"s_setprio {pr[i]}")
        if i + 1 < NT: mS(t, i + 1)
        if i + 2 < NT: readK(t, i + 2)
        if i == 0: t("s_nop 7")
        if fs[i]:
            E(0); E(1); E(2); C(0); E(3)
            mPV(t, i - 1, 1)
            if i + 1 < NT: readV(t, i + 1)
            E(4); C(1); E(5); E(6); C(2); E(7)
            fmfma(t)
            emit_floads(t, 1)
            E(8); C(3); E(9); E(10); E(11); C(4)
            mPV(t, i, 0)
            emit_floads(t, 1)
            hook(t, i)
            E(12); C(5); E(13)
            if fs[i] > 1:
                fmfma(t); emit_floads(t, 1)
            E(14); C(6); E(15)
            if i == NT - 1: t(f"v_sub_f32 v{vGf}, 1.0, v{vGf}")
            else: t("s_nop 0")
            C(7)
        else:
            E(0); E(1); E(2); C(0); E(3); E(4); C(1)
            if i > 0: mPV(t, i - 1, 1)
            readV(t, i + 1)
            E(5); E(6); C(2); E(7); E(8); C(3); E(9); E(10)
            mPV(t, i, 0, first=(i == 0))
            hook(t, i)
            E(11); C(4); E(12); C(5); E(13); E(14); C(6); E(15)
            t("s_nop 0")
            C(7)
    def head(t, isL):
        X.vq = Q("vmcnt", 63); X.lq = Q("lgkmcnt", 15); X.nf = 0; X.nfl = 0
        t(setup)
        if isL:
            t(f"""
            s_sub_u32 s{sT}, s{sWave}, 4
            s_mul_i32 s{sLK}, s{sT}, {N1*256}
            s_add_u32 s{sSK}, s{sKV}, s{sLK}
            s_add_u32 s{sSK}, s{sSK}, {NE*1024}
            """)
        t("s_barrier")
        SP.st(t, 3)
        if SP.on: t("s_waitcnt lgkmcnt(0)")
        t(f"ds_read_b128 {vr(vQ,4)}, v{vT2} offset:{QE-KE}"); X.lq.issue("q")
        readK(t, 0); readK(t, 1); readV(t, 0)
        mS(t, 0)
    tC = Asm(); tC.label("L_attC")
    head(tC, False)
    HS = P("hs", 3)
    def hookC(t, i):
        k = i - HS
        if HE: k = 5 if i >= 2 else -1
        if k in (0, 1):
            for q in range(2): t(f"buffer_store_dwordx4 {vr(vHA+8*k+4*q,4)}, v{vL16}, {WS}, s{sSA} offen offset:{(2*k+q)*1024}{SC}")
        if k == 2:
            for q in range(2): t(f"buffer_store_dwordx4 {vr(vHB+4*q,4)}, v{vL16}, {WS}, s{sSB} offen offset:{q*1024}{SC}")
        if k == 3:
            t(f"s_cmp_lg_u32 s{sOdd}, 0")
            t("s_cbranch_scc1 L_noh4")
            for q in range(2): t(f"buffer_store_dwordx4 {vr(vHB+8+4*q,4)}, v{vL16}, {WS}, s{sSB} offen offset:{(2+q)*1024}{SC}")
            t.label("L_noh4")
        if k >= 5:
            for x in flag_check(vTk2, sFl2, stamp=(1 if PS else None)): emit(t, x)
    for i in range(B1): tile(tC, i, hookC, prC)
    tC("s_barrier")
    tC("s_branch L_join")
    lqC = list(X.lq.q)
    tL = Asm(); tL.label("L_attL")
    head(tL, True)
    dm = []
    for j in range(N1 // 4):
        Lx = []
        if j % 4 == 0:
            Lx += [f"s_add_u32 s{sX}, s{sLK}, {j*1024}", f"s_mov_b32 m0, s{sX}", f"s_add_u32 s{sX}, s{sSK}, {j*1024}"]
        Lx.append(f"buffer_load_dwordx4 v{vL16}, {WS}, s{sX} offen offset:{(j%4)*1024} sc1 lds")
        dm.append(("c1", Lx))
    def emit_dma(t, n):
        while n > 0 and dm:
            tag, Lx = dm.pop(0)
            for x in Lx: t(x)
            X.vq.issue(tag); n -= 1
    D0 = P("dz", 5)
    emit_dma(tL, D0)
    def hookL(t, i):
        emit_dma(t, 4)
    for i in range(B1): tile(tL, i, hookL, prL)
    assert not dm
    tL(X.vq.need({"c1"}))
    tL("s_barrier")
    tL(f"s_cmp_lg_u32 s{sDone}, 0")
    tL("s_cbranch_scc1 L_join")
    for b, (sreg, base) in enumerate(((sSA, vHA), (sSB, vHB))):
        if b == 1:
            tL(f"s_cmp_ge_u32 s{sBand}, 16")
            tL("s_cbranch_scc1 L_join")
        for n in range(4):
            tL(f"buffer_store_dwordx4 {vr(base+4*n,4)}, v{vL16}, {WS}, s{sreg} offen{SC}")
            if n < 3: tL(f"s_add_u32 s{sreg}, s{sreg}, {144*1024}")
    assert lqC == X.lq.q
    t = Asm(); t.label("L_join")
    vq = X.vq
    def hookJ(t, i):
        if B1 + 2 <= i < PI - 1:
            for x in flag_check(vTk2, sFl2, stamp=(1 if PS else None)): emit(t, x)
        if i == PI - 1:
            for x in flag_check(vTk2, sFl2, block=True, stamp=(1 if PS else None)): emit(t, x)
        if i == PI - 2: t(pofs)
        if i == PI:
            t(f"""
            s_mov_b32 s{sT2}, {WS_F}
            s_mov_b32 s4, -1
            s_mov_b32 s5, 0x003fffff
            s_mov_b64 exec, s[4:5]
            buffer_load_dwordx2 v[{vPl}:{vPl+1}], v{vPo}, {WS}, s{sT2} offen sc1
            s_mov_b64 exec, -1
            """)
            vq.issue("p")
        if i == PT:
            if PS: SP.st(t, 5); t(X.lq.drain())
            t(vq.need({"p"}))
            t("s_mov_b64 exec, s[4:5]")
            t(f"v_cmp_ne_u64 vcc, s[{sTok}:{sTok+1}], v[{vPl}:{vPl+1}]")
            t("s_mov_b64 exec, -1")
            t("s_nop 0")
            t("s_cbranch_vccnz L_pslow")
            t.label("L_pok")
            ool.label("L_pslow")
            poll(ool, [vPl], [vPo], sT2, mask="s[4:5]")
            ool("s_branch L_pok")
            if PS: SP.st(t, 6); t(X.lq.drain())
            t(f"""
            v_and_b32 v{vPo}, 31, v{vL}
            v_lshlrev_b32 v{vPo}, 2, v{vPo}
            s_lshl_b32 s{sT}, s{sTT}, 7
            s_add_u32 s{sT}, s{sT}, {WS_G}
            s_lshl_b32 s{sT2}, s{sQb}, 7
            s_add_u32 s{sT2}, s{sT2}, {WS_G}
            """)
        if PT <= i < F0: emit_floads(t, (9 + F0 - PT - 1) // (F0 - PT))
        if i == F0:
            t(f"buffer_load_dword v{vGf}, v{vPo}, {WS}, s{sT} offen sc1")
            t(f"buffer_load_dword v{vGq}, v{vPo}, {WS}, s{sT2} offen sc1")
            vq.issue("g"); vq.issue("g")
        if WO0 <= i < WO0 + 32 and (i - WO0) % 2 == 0: woload(t, (i - WO0) // 2)
    for i in range(B1, NT):
        if TSL and i in TSL: SP.st(t, [1, 2, 4, 5, 6, 7][TSL.index(i)]); t(X.lq.drain())
        if SP.on and i in (B1, B2) and not FS and not PS and not TSL:
            SP.st(t, {B1: 4, B2: 5}[i]); t(X.lq.drain())
        if PS and i in (B1, 24): SP.st(t, {B1: 4, 24: 7}[i]); t(X.lq.drain())
        tile(t, i, hookJ)
    assert X.nf == 56 and X.nfl == len(floads)
    t("s_nop 1")
    mPV(t, NT - 1, 1)
    t("s_setprio 3")
    for r in range(12): t(f"v_mul_f32 v{vFA+r}, v{vFA+r}, v{vGf}")
    if not FS and not PS and not TSL: SP.st(t, 6)
    t(f"""
    v_add_f32 v{vT}, abs(v{vO}), abs(v{vO+1})
    v_add_f32 v{vT2}, abs(v{vO+2}), abs(v{vO+3})
    v_add_f32 v{vT}, v{vT}, abs(v{vO+4})
    v_add_f32 v{vT2}, v{vT2}, abs(v{vO+5})
    v_add_f32 v{vT}, v{vT}, abs(v{vO+6})
    v_add_f32 v{vT2}, v{vT2}, abs(v{vO+7})
    v_add_f32 v{vT}, v{vT}, v{vT2}
    s_mov_b32 s{sT}, 0x7f000000
    s_mov_b32 s{sT2}, {(127+80) << 23}
    s_mov_b32 s{sT3}, {(127-80) << 23}
    v_cmp_nle_f32 vcc, v{vT}, s{sT}
    v_cmp_nle_f32 s[20:21], v{vO+8}, s{sT2}
    v_cmp_nge_f32 s[22:23], v{vO+8}, s{sT3}
    s_nop 0
    s_or_b64 vcc, vcc, s[20:21]
    s_or_b64 vcc, vcc, s[22:23]
    s_cbranch_vccnz L_slow
    """)
    t.label("L_fin")
    vOf = 140; vAw = vS[0]
    t(f"""
    v_rcp_f32 v{vT}, v{vO+8}
    s_lshl_b32 s{sT}, s{sQb}, 15
    s_lshl_b32 s{sT2}, s{sHead}, 10
    s_add_u32 s{sT}, s{sT}, s{sT2}
    s_add_u32 s{sT}, s{sT}, {WS_O}
    v_mul_f32 v{vT}, v{vT}, v{vGq}
    """)
    for j in range(8): t(f"v_mul_f32 v{vO+j}, v{vO+j}, v{vT}")
    for j in range(4): t(f"v_cvt_pk_bf16_f32 v{vP+j}, v{vO+2*j}, v{vO+2*j+1}")
    RED = 65536
    t(f"""
    buffer_store_dwordx4 {vr(vP,4)}, v{vL16}, {WS}, s{sT} offen sc1
    s_lshl_b32 s{sH}, s{sTT}, 15
    s_lshl_b32 s{sT2}, s{sD}, 13
    s_add_u32 s{sH}, s{sH}, s{sT2}
    s_add_u32 s{sH}, s{sH}, {WS_O}
    s_add_u32 s{sW0}, s{sH}, 4096
    s_mov_b32 s{sT4}, 0
    """)
    if not FS and not PS and not TSL: SP.st(t, 7)
    def oload(L, k):
        L(f"buffer_load_dwordx4 {vr(vOf+4*k,4)}, v{vL16}, {WS}, s{sH if k < 4 else sW0} offen offset:{(k%4)*1024} sc1")
    for r in range(12, 32): t(f"v_mul_f32 v{vFA+r}, v{vFA+r}, v{vGf}")
    t("s_barrier")
    for k in range(8): oload(t, k)
    t(f"""
    s_and_b32 s{sT2}, s{sWave}, 1
    s_lshl_b32 s{sT2}, s{sT2}, 15
    s_add_u32 s{sT2}, s{sT2}, {RED}
    s_lshl_b32 s{sT3}, s{sD}, 13
    s_add_u32 s{sT3}, s{sT3}, s{sT2}
    v_add_u32 v{vT}, s{sT3}, v{vL16}
    s_lshl_b32 s{sT3}, s{sD}, 11
    s_add_u32 s{sT3}, s{sT3}, s{sT2}
    v_add_u32 v{vT2}, s{sT3}, v{vL16}
    v_and_b32 v{vPo}, 31, v{vL}
    v_lshlrev_b32 v{vPo}, 10, v{vPo}
    v_lshrrev_b32 v{vM}, 5, v{vL}
    v_lshl_add_u32 v{vPo}, v{vM}, 4, v{vPo}
    s_lshl_b32 s{sT}, s{sTT}, 15
    s_lshl_b32 s{sT2}, s{sNb}, 7
    s_add_u32 s{sT}, s{sT}, s{sT2}
    s_lshl_b32 s{sT2}, s{sD}, 5
    s_add_u32 s{sT}, s{sT}, s{sT2}
    s_mov_b64 s[20:21], -1
    v_lshlrev_b32 v{vP+4}, 10, v{vL}
    v_add_u32 v{vP+4}, 1020, v{vP+4}
    """)
    for k in range(8):
        t.label(f"L_o{k}")
        t(f"""
        s_waitcnt vmcnt({7-k})
        v_max3_u32 v{vM}, v{vOf+4*k}, v{vOf+4*k+1}, v{vOf+4*k+2}
        v_max_u32 v{vM}, v{vM}, v{vOf+4*k+3}
        v_cmp_eq_u32 vcc, -1, v{vM}
        s_nop 0
        s_and_b64 vcc, vcc, s[20:21]
        s_cbranch_vccnz L_ow{k}
        """)
        for i in range(2):
            t(f"v_mfma_f32_32x32x16_bf16 {vr(vFA+16*i,16)}, {vr(vWo+32*i+4*k,4)}, {vr(vOf+4*k,4)}, {vr(vFA+16*i,16)}")
        ool.label(f"L_ow{k}")
        ool("s_waitcnt vmcnt(0)")
        if k < 7:
            regs = list(range(vOf + 4 * k + 4, vOf + 32))
            ool(f"v_max_u32 v{vM}, v{regs[0]}, v{regs[1]}")
            for q in range(2, len(regs), 2): ool(f"v_max3_u32 v{vM}, v{vM}, v{regs[q]}, v{regs[q+1]}")
            ool(f"""
            v_cmp_eq_u32 vcc, -1, v{vM}
            s_nop 1
            s_cbranch_vccz L_of{k}
            """)
            ool.label(f"L_ol{k}")
            ool(f"""
            s_sleep {P('os', 3)}
            s_mov_b64 exec, {(0xff << k) & 0xff}
            buffer_load_dword v{vM}, v{vP+4}, {WS}, s{sH} offen sc1
            s_add_u32 s{sT4}, s{sT4}, 1
            s_cmp_gt_u32 s{sT4}, {SPIN_MAX // 4}
            s_cselect_b64 s[20:21], 0, -1
            s_waitcnt vmcnt(0)
            v_cmp_eq_u32 vcc, -1, v{vM}
            s_mov_b64 exec, -1
            s_nop 0
            s_and_b32 s22, vcc_lo, s20
            s_bitcmp0_b32 s22, {k}
            s_cbranch_scc1 L_or{k}
            s_cmp_lg_u32 s22, {1 << k}
            s_cbranch_scc1 L_ol{k}
            """)
            ool.label(f"L_or{k}")
            for q in range(k, 8): oload(ool, q)
            ool(f"s_branch L_o{k}")
            ool.label(f"L_of{k}")
        ool(f"s_sleep {P('of', 1)}")
        oload(ool, k)
        ool(f"""
        s_add_u32 s{sT4}, s{sT4}, 1
        s_cmp_gt_u32 s{sT4}, {SPIN_MAX // 4}
        s_cselect_b64 s[20:21], 0, -1
        s_waitcnt vmcnt(0)
        s_branch L_o{k}
        """)
    SP.st(t, 8)
    if SP.on: t("s_waitcnt lgkmcnt(0)")
    t("s_nop 10")
    for u in range(8):
        if u == 4: t("s_nop 0")
        t(f"ds_write_b128 v{vT}, {vr(vFA+4*u,4)} offset:{u*1024}")
    t("s_waitcnt lgkmcnt(0)")
    t("s_barrier")
    vR = vOf
    for p in range(4):
        for u in range(2):
            t(f"ds_read_b128 {vr(vR+16*u+4*p,4)}, v{vT2} offset:{p*8192+u*1024}")
    t("s_waitcnt lgkmcnt(0)")
    for u in range(2):
        b = vR + 16 * u
        for r in range(4): t(f"v_add_f32 v{b+r}, v{b+r}, v{b+4+r}")
        for r in range(4): t(f"v_add_f32 v{b+8+r}, v{b+8+r}, v{b+12+r}")
        for r in range(4): t(f"v_add_f32 v{b+r}, v{b+r}, v{b+8+r}")
    t(f"""
    v_cvt_pk_bf16_f32 v{vP}, v{vR}, v{vR+1}
    v_cvt_pk_bf16_f32 v{vP+1}, v{vR+2}, v{vR+3}
    v_cvt_pk_bf16_f32 v{vP+2}, v{vR+16}, v{vR+17}
    v_cvt_pk_bf16_f32 v{vP+3}, v{vR+18}, v{vR+19}
    s_nop 1
    v_permlane32_swap_b32 v{vP}, v{vP+2}
    v_permlane32_swap_b32 v{vP+1}, v{vP+3}
    buffer_store_dwordx4 {vr(vP,4)}, v{vPo}, {OUT}, s{sT} offen
    """)
    if SP.on:
        t("s_waitcnt vmcnt(0)")
        SP.st(t, 9)
        t("s_memrealtime s[60:61]")
        t("s_waitcnt lgkmcnt(0)")
        t("s_mov_b32 s94, s101")
        t("s_mov_b32 s96, s60")
        SP.flush(t, WS, sWave, 12, sT)
    t.label("L_end")
    t("s_endpgm")
    b = Asm()
    b.label("L_slow")
    Sx = vS[0]
    b(f"s_mov_b32 s{sT}, 0xff800000")
    b(f"v_mov_b32 v{vM}, s{sT}")
    b(f"v_mov_b32 v{vKA}, v{vL16}")
    b(f"v_subrev_u32 v{vVA}, {VE - 65536}, v{vVA}")
    for j in range(16): b(f"v_mov_b32 v{vO+j}, 0")
    b("s_mov_b32 s22, 0")
    b.label("L_slowloop")
    b(f"""
    buffer_load_dwordx4 {vr(vK[0],4)}, v{vKA}, {WS}, s{sKV} offen sc1
    s_mov_b64 exec, s[{sVM}:{sVM+1}]
    buffer_load_dwordx4 {vr(vV[0][0],4)}, v{vVA}, {WS}, s{sKV} offen sc1
    buffer_load_dwordx4 {vr(vV[0][1],4)}, v{vVA}, {WS}, s{sKV} offen offset:512 sc1
    s_mov_b64 exec, -1
    s_waitcnt vmcnt(0)
    v_mfma_f32_32x32x16_bf16 {vr(Sx,16)}, {vr(vK[0],4)}, {vr(vQ,4)}, 0
    v_add_u32 v{vKA}, 1024, v{vKA}
    v_add_u32 v{vVA}, 1024, v{vVA}
    s_nop 9
    v_max3_f32 v{vT}, v{Sx}, v{Sx+1}, v{Sx+2}
    v_max3_f32 v{vT}, v{vT}, v{Sx+3}, v{Sx+4}
    v_max3_f32 v{vT}, v{vT}, v{Sx+5}, v{Sx+6}
    v_max3_f32 v{vT}, v{vT}, v{Sx+7}, v{Sx+8}
    v_max3_f32 v{vT}, v{vT}, v{Sx+9}, v{Sx+10}
    v_max3_f32 v{vT}, v{vT}, v{Sx+11}, v{Sx+12}
    v_max3_f32 v{vT}, v{vT}, v{Sx+13}, v{Sx+14}
    v_max_f32 v{vT}, v{vT}, v{Sx+15}
    v_mov_b32 v{vT2}, v{vT}
    s_nop 1
    v_permlane32_swap_b32 v{vT}, v{vT2}
    s_nop 1
    v_max3_f32 v{vT}, v{vT}, v{vT2}, v{vM}
    v_sub_f32 v{vT2}, v{vM}, v{vT}
    v_exp_f32 v{vT2}, v{vT2}
    v_mov_b32 v{vM}, v{vT}
    """)
    for j in range(16): b(f"v_mul_f32 v{vO+j}, v{vO+j}, v{vT2}")
    for j in range(16): b(f"v_sub_f32 v{Sx+j}, v{Sx+j}, v{vM}")
    for j in range(16): b(f"v_exp_f32 v{Sx+j}, v{Sx+j}")
    b("s_nop 0")
    for j in range(8): b(f"v_cvt_pk_bf16_f32 v{vP+j}, v{Sx+2*j}, v{Sx+2*j+1}")
    b(f"""
    s_nop 1
    v_mfma_f32_32x32x16_bf16 {vr(vO,16)}, {vr(vV[0][0],4)}, {vr(vP,4)}, {vr(vO,16)}
    v_mfma_f32_32x32x16_bf16 {vr(vO,16)}, {vr(vV[0][1],4)}, {vr(vP+4,4)}, {vr(vO,16)}
    s_add_u32 s22, s22, 1
    s_cmp_lt_u32 s22, 64
    s_nop 11
    s_cbranch_scc1 L_slowloop
    s_branch L_fin
    """)
    check(a.lines + c.lines + ce.lines + tC.lines + t.lines, "even")
    check(a.lines + c.lines + co.lines + tC.lines, "odd")
    check(a.lines + l.lines + le.lines + tL.lines + t.lines, "loader")
    check(a.lines + l.lines + lo.lines + tL.lines, "loader_odd")
    check(b.lines + b.lines + t.lines[t.lines.index("L_fin:"):], "slow")
    nb = lambda L: sum(1 for x in L if "s_barrier" in x)
    print("barriers", nb(c.lines + ce.lines + tC.lines), nb(l.lines + le.lines + tL.lines), nb(c.lines + co.lines + tC.lines), nb(l.lines + lo.lines + tL.lines), nb(t.lines), "ncom", ncom, "fs", "".join(map(str, fs)))
    return khead(name) + "".join(x.text() for x in (a, l, le, lo, c, ce, co, tC, tL, t, b, ool)) + kd(name, 256, 102)

if __name__ == "__main__":
    import sys
    NAME = "gated_mix__softmax_full_mha__dense_activation_silu__prompt"
    ref = open(f"cdna_kernels/{NAME}.s.ref").read().split("\n")
    hdr = [x for x in ref if x.startswith(";") and "@launch" not in x and "Override launch" not in x and "grid=ceil" not in x]
    dst = sys.argv[1] if len(sys.argv) > 1 else f"cdna_kernels/{NAME}.s"
    ST = int(sys.argv[2]) if len(sys.argv) > 2 else 0
    aslist = ST > 0 or (len(sys.argv) > 4)
    out = "\n".join(hdr) + "\n"
    if aslist: out += f"; @launch kernel={NAME}_kernel grid=(256,1,1) block=(512,1,1) lds=163840\n"
    else: out += "; @launch grid=(256,1,1) block=(512,1,1) lds=163840\n"
    out += '.amdgcn_target "amdgcn-amd-amdhsa--gfx950"\n'
    out += gen(NAME + "_kernel", stamps=ST, exp=(sys.argv[3] if len(sys.argv) > 3 else ""))
    open(dst, "w").write(out)
    print("wrote", dst, len(out))
```

```python
from asmlib import *
from k1 import f32, QSCALE
from k1b import spread
import re

WS_Q = 0; WS_KV = 2 << 20; WS_O = 6 << 20; WS_H = 8 << 20; WS_W = 16 << 20; WS_G = 20 << 20
WS_F = 24 << 20
FQ = WS_F
FH = WS_F + 0x20000
FW = WS_F + 0x40000
FG = WS_F + 0x50000
WS_SIZE = 32 << 20
SC = " sc1"
SPIN_MAX = 20000

def gen(name, stamps=0, exp=""):
    def P(key, dflt):
        m = re.search(key + r"(\d+)", exp)
        return int(m.group(1)) if m else dflt
    sWave = 12; sRb = 13; sCg = 14; sT = 15; sT2 = 16; sT3 = 17; sTT = 18; sFA = 19; sFB = 50; sOdd = 51; sG = 59; sT4 = 95
    sTok = 72; sGr = 10; sDone = 11
    DBG = "s[64:67]"; OUT = "s[68:71]"; WS = "s[32:35]"
    vL = 2
    uid = [0]
    SP = Stamper(stamps >= 2, base=74, slot=0)
    if stamps == 3: SP.ins = "s_memrealtime"
    FS = "fs" in exp
    PS = "ps" in exp and SP.on
    F2 = "fs2" in exp and SP.on
    KB1 = "kb" in exp
    HY = "hy" in exp
    HX = "hx" in exp
    TSL = [int(x) for x in re.search(r"ts([\d.]+)", exp).group(1).split(".")] if re.search(r"ts\d", exp) else None
    a = Asm()
    ool = Asm()
    a("""
    s_cmp_ge_u32 s2, 256
    s_cbranch_scc1 L_end
    """)
    SP.st(a, 0)
    if SP.on: a("s_memrealtime s[60:61]\ns_waitcnt lgkmcnt(0)\ns_mov_b32 s101, s60")
    a(f"""
    s_load_dwordx4 s[4:7], s[0:1], 0
    s_load_dwordx2 s[8:9], s[0:1], 16
    s_load_dwordx4 s[44:47], s[0:1], 32
    s_load_dwordx4 s[52:55], s[0:1], 48
    s_load_dwordx4 s[60:63], s[0:1], 64
    v_lshrrev_b32 v1, 6, v0
    v_and_b32 v{vL}, 63, v0
    v_readfirstlane_b32 s{sWave}, v1
    s_and_b32 s{sT}, s2, 7
    s_lshr_b32 s{sT2}, s2, 3
    s_and_b32 s{sRb}, s{sT}, 1
    s_lshl_b32 s{sRb}, s{sRb}, 3
    s_and_b32 s{sT3}, s{sT2}, 7
    s_add_u32 s{sRb}, s{sRb}, s{sT3}
    s_lshr_b32 s{sCg}, s{sT}, 1
    s_lshl_b32 s{sCg}, s{sCg}, 2
    s_lshr_b32 s{sT3}, s{sT2}, 3
    s_add_u32 s{sCg}, s{sCg}, s{sT3}
    s_and_b32 s{sOdd}, s{sCg}, 1
    s_lshr_b32 s{sG}, s{sCg}, 1
    s_lshr_b32 s{sT}, s{sCg}, 2
    s_mul_i32 s{sT}, s{sT}, 14
    s_and_b32 s{sT2}, s{sCg}, 3
    s_lshl_b32 s{sT2}, s{sT2}, 3
    s_lshr_b32 s{sFA}, 0x0c080400, s{sT2}
    s_and_b32 s{sFA}, s{sFA}, 0xff
    s_add_u32 s{sFA}, s{sFA}, s{sT}
    s_lshr_b32 s{sFB}, 0x070a0602, s{sT2}
    s_and_b32 s{sFB}, s{sFB}, 0xff
    s_add_u32 s{sFB}, s{sFB}, s{sT}
    s_mov_b32 s22, {2048*1024}
    s_mov_b32 s23, 0x00020000
    s_mov_b32 s26, {512*3072}
    s_mov_b32 s27, 0x00020000
    s_mov_b32 s30, {512*3584}
    s_mov_b32 s31, 0x00020000
    s_mov_b32 s34, {WS_SIZE}
    s_mov_b32 s35, 0x00020000
    s_mov_b32 s39, 0x00020000
    s_mov_b32 s42, 1024
    s_mov_b32 s43, 0x00020000
    s_mov_b32 s66, 256
    s_mov_b32 s67, 0x00020000
    s_mov_b32 s70, {2048*1024}
    s_mov_b32 s71, 0x00020000
    s_lshl_b32 s100, s{sRb}, 3
    s_add_u32 s100, s100, s{sG}
    s_cmp_lt_u32 s{sWave}, 4
    s_cbranch_scc1 L_comp
    """)
    sBand = 100
    srdsetup = """
    s_waitcnt lgkmcnt(0)
    s_mov_b32 s20, s4
    s_mov_b32 s21, s5
    s_mov_b32 s24, s6
    s_mov_b32 s25, s7
    s_mov_b32 s28, s44
    s_mov_b32 s29, s45
    s_mov_b32 s32, s62
    s_mov_b32 s33, s63
    s_mov_b32 s40, s52
    s_mov_b32 s41, s53
    s_mov_b32 s64, s60
    s_mov_b32 s65, s61
    s_mov_b32 s68, s54
    s_mov_b32 s69, s55
    """
    def get_token(L, vt):
        uid[0] += 1; u = uid[0]
        L(f"v_mov_b32 v{vt+2}, 0")
        L(f"s_mov_b32 s{sT4}, 0")
        L.label(f"L_tok{u}")
        L(f"""
        buffer_load_dwordx2 v[{vt}:{vt+1}], v{vt+2}, {DBG}, 0 offen sc1
        s_add_u32 s{sT4}, s{sT4}, 1
        s_waitcnt vmcnt(0)
        v_readfirstlane_b32 s{sTok}, v{vt}
        v_readfirstlane_b32 s{sTok+1}, v{vt+1}
        s_cmp_gt_u32 s{sT4}, {SPIN_MAX}
        s_cbranch_scc1 L_tokd{u}
        s_cmp_eq_u32 s{sTok}, 0
        s_cbranch_scc1 L_tok{u}
        """)
        L.label(f"L_tokd{u}")
    def token_issue(L, vt):
        L(f"v_mov_b32 v{vt+2}, 0")
        L(f"buffer_load_dwordx2 v[{vt}:{vt+1}], v{vt+2}, {DBG}, 0 offen sc1")
    def token_finish(L, vt, wait):
        uid[0] += 1; lab = f"L_tokok{uid[0]}"
        L(wait)
        L(f"v_readfirstlane_b32 s{sTok}, v{vt}")
        L(f"v_readfirstlane_b32 s{sTok+1}, v{vt+1}")
        L(f"s_cmp_lg_u32 s{sTok}, 0")
        L(f"s_cbranch_scc1 {lab}")
        get_token(L, vt)
        L.label(lab)
    def flag_store(vtok, voff0, soff):
        return ["s_mov_b64 exec, 1",
                f"buffer_store_dwordx2 v[{vtok}:{vtok+1}], v{voff0}, {WS}, s{soff} offen sc1",
                "s_mov_b64 exec, -1"]
    def flag_check(vtok, soff, block=False, stamp=None, cnt=0):
        uid[0] += 1; u = uid[0]
        if block: L = [f"s_cmp_eq_u32 s{sDone}, 0"]
        else:
            L = [f"s_getreg_b32 s{sGr}, hwreg(HW_REG_IB_STS)", f"s_and_b32 s{sGr}, s{sGr}, 0x00c0000f",
                 f"s_or_b32 s{sGr}, s{sGr}, s{sDone}", f"s_cmp_eq_u32 s{sGr}, 0"]
        L += [f"s_cbranch_scc1 L_fc{u}", f"L_fcr{u}:"]
        ool.label(f"L_fc{u}")
        ool(f"s_waitcnt vmcnt({cnt})")
        for x in flag_store(vtok, vtok + 2, soff): ool(x)
        ool(f"s_mov_b32 s{sDone}, 1")
        if stamp is not None and SP.on:
            ool(SP.line(stamp)); ool("s_waitcnt lgkmcnt(0)")
        ool(f"s_branch L_fcr{u}")
        return L
    def emit(L, x):
        if x is None: return
        if x.endswith(":"): L.label(x[:-1])
        else: L(x)
    def poll(L, regs, voffs, soff, mask=None, sleep=1):
        uid[0] += 1; u = uid[0]
        L(f"s_mov_b32 s{sT4}, 0")
        if mask: L(f"s_mov_b64 exec, {mask}")
        L.label(f"L_poll{u}")
        for vd, vo in zip(regs, voffs):
            L(f"buffer_load_dwordx2 v[{vd}:{vd+1}], v{vo}, {WS}, s{soff} offen sc1")
        L(f"s_add_u32 s{sT4}, s{sT4}, 1")
        L("s_waitcnt vmcnt(0)")
        L(f"v_cmp_ne_u64 vcc, s[{sTok}:{sTok+1}], v[{regs[0]}:{regs[0]+1}]")
        if len(regs) > 1:
            L(f"v_cmp_ne_u64 s[4:5], s[{sTok}:{sTok+1}], v[{regs[1]}:{regs[1]+1}]")
            L("s_nop 1")
            L("s_or_b64 vcc, vcc, s[4:5]")
        else: L("s_nop 1")
        L(f"s_cmp_gt_u32 s{sT4}, {SPIN_MAX}")
        L(f"s_cbranch_scc1 L_polld{u}")
        L(f"s_cbranch_vccz L_polld{u}")
        if sleep: L(f"s_sleep {sleep}")
        L(f"s_branch L_poll{u}")
        L.label(f"L_polld{u}")
        if mask: L("s_mov_b64 exec, -1")

    NSLOT = 5; SLOTB = 32768
    slot = lambda st: (st % NSLOT) * SLOTB
    XO, AO, BO = 0, 16384, 24576
    NE = 12
    KE, VE, QE = 65536, 65536 + NE * 1024, 65536 + 2 * NE * 1024
    NK, NV = 44, 43
    KM, VM = 98304, 131072
    KL, VL = 0, 20480
    GW = 65536 + 28672
    GO = 163840 - 64
    sHead = 56; sQb = 57; sKV = 58; sNb = 48
    sSA = 53; sSB = 54; sFl = 52; sFl2 = 49
    vHA = 108; vHB = 128
    attdec = f"""
    s_and_b32 s{sHead}, s2, 7
    s_lshl_b32 s{sHead}, s{sHead}, 2
    s_lshr_b32 s{sT}, s2, 3
    s_and_b32 s{sT2}, s{sT}, 3
    s_add_u32 s{sHead}, s{sHead}, s{sT2}
    s_lshr_b32 s{sNb}, s{sT}, 2
    s_lshl_b32 s{sQb}, s{sNb}, 3
    s_add_u32 s{sQb}, s{sQb}, s{sWave}
    s_lshl_b32 s{sKV}, s{sHead}, 17
    s_add_u32 s{sKV}, s{sKV}, {WS_KV}
    """
    l = Asm()
    sJ = 52; sM = 53; sSo = 54; sXb = 55; sAb = 56; sBb = 57; sFb = 58
    sJ4k, sJ2k, sJ1k, sJ8k = 96, 97, 98, 99
    sXc, sAc, sBc, sRot = 60, 61, 62, 63
    sWA, sWB = 60, 61
    vXe = 4; vXo = 5; vQk = 6; vVs = 7; vFp = 8; vFs = 9; vR = 10
    vGW = 55; vGA = 56; vGx = 60; vGw = 76; vGa = 92; vGt = 20
    l(f"""
    v_lshrrev_b32 v{vR}, 3, v{vL}
    v_and_b32 v{vR+1}, 7, v{vL}
    v_lshrrev_b32 v{vR+2}, 4, v{vL}
    v_xor_b32 v{vR+3}, v{vR+1}, v{vR+2}
    v_lshlrev_b32 v{vR+3}, 4, v{vR+3}
    v_lshl_add_u32 v{vXe}, v{vR}, 10, v{vR+3}
    v_xor_b32 v{vXo}, 64, v{vXe}
    v_and_b32 v{vR+2}, 1, v{vR+2}
    v_lshlrev_b32 v{vR+2}, 2, v{vR+2}
    v_xor_b32 v{vR+3}, v{vR+1}, v{vR+2}
    v_lshlrev_b32 v{vR+3}, 4, v{vR+3}
    v_mul_u32_u24 v{vQk}, 3072, v{vR}
    v_add_u32 v{vQk}, v{vQk}, v{vR+3}
    v_mul_u32_u24 v{vFp}, 3584, v{vR}
    v_add_u32 v{vFp}, v{vFp}, v{vR+3}
    v_lshrrev_b32 v{vR}, 2, v{vL}
    v_and_b32 v{vR+1}, 3, v{vL}
    v_lshlrev_b32 v{vR+1}, 4, v{vR+1}
    v_mul_u32_u24 v{vVs}, 3072, v{vR}
    v_add_u32 v{vVs}, v{vVs}, v{vR+1}
    v_mul_u32_u24 v{vFs}, 3584, v{vR}
    v_add_u32 v{vFs}, v{vFs}, v{vR+1}
    v_lshlrev_b32 v{vR}, 4, v{vL}
    s_sub_u32 s{sBb}, s{sWave}, 4
    s_lshl_b32 s{sJ4k}, s{sBb}, 12
    s_lshl_b32 s{sJ2k}, s{sBb}, 11
    s_lshl_b32 s{sJ1k}, s{sBb}, 10
    s_lshl_b32 s{sJ8k}, s{sBb}, 13
    s_lshl_b32 s{sFb}, s{sRb}, 17
    s_lshl_b32 s{sT}, s{sBb}, 15
    s_add_u32 s{sFb}, s{sFb}, s{sT}
    s_lshl_b32 s{sAb}, s{sG}, 7
    s_mul_i32 s{sT}, s{sBb}, {16*3072}
    s_add_u32 s{sAb}, s{sAb}, s{sT}
    s_lshl_b32 s{sT2}, s{sOdd}, 10
    s_add_u32 s{sAb}, s{sAb}, s{sT2}
    s_lshl_b32 s{sBb}, s{sCg}, 6
    s_add_u32 s{sBb}, s{sBb}, 2048
    s_add_u32 s{sBb}, s{sBb}, s{sT}
    s_lshr_b32 s{sT3}, s{sCg}, 2
    s_lshl_b32 s{sT3}, s{sT3}, 1
    s_add_u32 s{sT3}, s{sT3}, s{sRb}
    """)
    l(srdsetup)
    l(f"""
    s_sub_u32 s{sJ}, s{sWave}, 4
    s_mov_b32 s{sXb}, s{sFb}
    s_and_b32 s{sRot}, s{sT3}, {0 if "norot" in exp else 7}
    """)
    def dma(L, vo, srd, m0base, m0j, src_sreg, src_add, sc=""):
        L(f"s_add_u32 s{sM}, s{m0j}, {m0base}")
        L(f"s_mov_b32 m0, s{sM}")
        L(f"s_add_u32 s{sSo}, s{src_sreg}, {src_add}")
        L(f"buffer_load_dwordx4 v{vo}, {srd}, s{sSo} offen{sc} lds")
    def stage_dma(L, st, odd):
        n = 0
        if st < 8:
            L(f"""
            s_add_u32 s{sT}, s{sRot}, {st}
            s_and_b32 s{sT}, s{sT}, 7
            s_lshl_b32 s{sXc}, s{sT}, 7
            s_add_u32 s{sXc}, s{sXc}, s{sXb}
            s_mul_i32 s{sT}, s{sT}, {64*3072}
            s_add_u32 s{sAc}, s{sAb}, s{sT}
            s_add_u32 s{sBc}, s{sBb}, s{sT}
            """)
            for i in range(4):
                dma(L, vXe if i % 2 == 0 else vXo, "s[20:23]", slot(st) + XO + i * 1024, sJ4k, sXc, i * 8192); n += 1
            for i in range(2):
                dma(L, vQk, "s[24:27]", slot(st) + AO + i * 1024, sJ2k, sAc, (i * 8) * 3072); n += 1
            dma(L, vVs, "s[24:27]", slot(st) + BO, sJ1k, sBc, 0); n += 1
        elif st < 10 or not odd:
            sF = sFA if st < 10 else sFB
            L(f"s_lshl_b32 s{sFb}, s{sF}, 6")
            L(f"s_add_u32 s{sT}, s{sJ}, s{sRot}")
            L(f"s_add_u32 s{sT}, s{sT}, {(st % 2) * 4}")
            L(f"s_and_b32 s{sT}, s{sT}, 7")
            L(f"s_mul_i32 s{sT}, s{sT}, {64*3584}")
            L(f"s_add_u32 s{sFb}, s{sFb}, s{sT}")
            for i in range(8):
                dma(L, vFp, "s[28:31]", slot(st) + i * 1024, sJ8k, sFb, (i * 8) * 3584); n += 1
        else:
            for hb in range(2):
                L(f"s_lshl_b32 s{sFb}, s{sFB}, 6")
                L(f"s_lshl_b32 s{sT}, s{sJ}, 1")
                L(f"s_add_u32 s{sT}, s{sT}, s{sRot}")
                L(f"s_add_u32 s{sT}, s{sT}, {hb}")
                L(f"s_and_b32 s{sT}, s{sT}, 7")
                L(f"s_mul_i32 s{sT}, s{sT}, {64*3584}")
                L(f"s_add_u32 s{sFb}, s{sFb}, s{sT}")
                for i in range(4):
                    dma(L, vFs, "s[28:31]", slot(st) + (hb * 4 + i) * 1024, sJ8k, sFb, i * 16 * 3584); n += 1
        return n
    RB = slot(11)
    vRo = 16; vRa = 17; vD = 24; vTk = 52
    bandsrd = f"""
    s_cmp_lt_u32 s{sBand}, 32
    s_cselect_b32 s36, s8, s46
    s_cselect_b32 s37, s9, s47
    s_mov_b32 s38, {1792*1024}
    s_cselect_b32 s38, {512*1024}, s38
    s_cselect_b32 s{sT}, 0, 32
    s_sub_u32 s{sT}, s{sBand}, s{sT}
    s_mov_b32 s4, s46
    s_mov_b32 s5, s47
    s_mov_b32 s6, {1792*1024}
    s_mov_b32 s7, 0x00020000
    """
    def relayout_issue(lo, vqo):
        lo(f"""
        v_lshrrev_b32 v{vGt}, 4, v{vL}
        v_lshlrev_b32 v{vGt}, 10, v{vGt}
        v_and_b32 v{vGt+1}, 15, v{vL}
        v_lshl_add_u32 v{vRo}, v{vGt+1}, 4, v{vGt}
        v_lshrrev_b32 v{vGt}, 5, v{vL}
        v_lshlrev_b32 v{vGt}, 10, v{vGt}
        v_bfe_u32 v{vGt+1}, v{vL}, 2, 2
        v_lshl_add_u32 v{vGt}, v{vGt+1}, 8, v{vGt}
        v_bfe_u32 v{vGt+1}, v{vL}, 4, 1
        v_lshl_add_u32 v{vGt}, v{vGt+1}, 5, v{vGt}
        v_and_b32 v{vGt+1}, 3, v{vL}
        v_lshl_add_u32 v{vRa}, v{vGt+1}, 3, v{vGt}
        s_add_u32 s{sT}, s{sJ4k}, {RB}
        v_add_u32 v{vRa}, s{sT}, v{vRa}
        """)
        lo(bandsrd)
        lo(f"""
        s_lshl_b32 s{sFb}, s{sT}, 14
        s_lshl_b32 s{sT}, s{sJ}, 8
        s_add_u32 s{sFb}, s{sFb}, s{sT}
        """)
        for i in range(4):
            dma(lo, vRo, "s[36:39]", RB + i * 1024, sJ4k, sFb, i * 4096); vqo.issue("band")
        lo(f"""
        s_add_u32 s{sT}, s{sBand}, 96
        s_lshl_b32 s{sFb}, s{sT}, 14
        s_lshl_b32 s{sT}, s{sJ}, 8
        s_add_u32 s{sFb}, s{sFb}, s{sT}
        """)
        for i in range(4):
            dma(lo, vRo, "s[4:7]", RB + 16384 + i * 1024, sJ4k, sFb, i * 4096); vqo.issue("band")
    vqc = Q("vmcnt", 63)
    INIT = P("ini", 2)
    for _ in range(stage_dma(l, 0, False)): vqc.issue(0)
    l(f"""
    s_lshl_b32 s{sT}, s{sJ}, 8
    s_add_u32 s{sM}, s{sT}, {GW}
    s_mov_b32 m0, s{sM}
    s_mov_b64 exec, 0xffff
    buffer_load_dwordx4 v{vR}, s[40:43], s{sT} offen lds
    s_mov_b64 exec, -1
    """)
    vqc.issue(0)
    for st in range(1, INIT):
        for _ in range(stage_dma(l, st, False)): vqc.issue(st)
    l(f"""
    s_cmp_lg_u32 s2, 0
    s_cbranch_scc1 L_notok
    s_cmp_lg_u32 s{sWave}, 4
    s_cbranch_scc1 L_notok
    s_memrealtime s[{sTok}:{sTok+1}]
    v_mov_b32 v{vTk+2}, 0
    s_waitcnt lgkmcnt(0)
    s_or_b32 s{sTok}, s{sTok}, 1
    v_mov_b32 v{vTk}, s{sTok}
    v_mov_b32 v{vTk+1}, s{sTok+1}
    s_mov_b64 exec, 1
    buffer_store_dwordx2 v[{vTk}:{vTk+1}], v{vTk+2}, {DBG}, 0 offen sc1
    s_mov_b64 exec, -1
    s_waitcnt vmcnt(0)
    """)
    l.label("L_notok")
    l(f"""
    v_and_b32 v{vGt}, 31, v{vL}
    v_lshlrev_b32 v{vGt}, 7, v{vGt}
    v_add_u32 v{vGt}, s{sJ4k}, v{vGt}
    v_lshrrev_b32 v{vGt+1}, 5, v{vL}
    v_bfe_u32 v{vGt+2}, v{vL}, 1, 3
    v_lshlrev_b32 v{vGW}, 4, v{vGt+1}
    v_add_u32 v{vGW}, {GW}, v{vGW}
    """)
    for s in range(4):
        l(f"v_or_b32 v{vGt+3}, {2*s}, v{vGt+1}")
        l(f"v_xor_b32 v{vGt+3}, v{vGt+3}, v{vGt+2}")
        l(f"v_lshl_add_u32 v{vGA+s}, v{vGt+3}, 4, v{vGt}")
    def gate_block(L, st):
        uid[0] += 1; u = uid[0]
        L(f"s_cmp_lg_u32 s{sCg}, 1")
        L(f"s_cbranch_scc1 L_ng{u}")
        L(f"s_add_u32 s{sT}, s{sRot}, {st}")
        L(f"s_and_b32 s{sT}, s{sT}, 7")
        L(f"s_lshl_b32 s{sT}, s{sT}, 7")
        L(f"v_add_u32 v{vGt}, s{sT}, v{vGW}")
        for s in range(4):
            L(f"v_add_u32 v{vGt+1}, {slot(st)+XO}, v{vGA+s}")
            L(f"ds_read_b128 {vr(vGx+4*s,4)}, v{vGt+1}")
            L(f"ds_read_b128 {vr(vGw+4*s,4)}, v{vGt} offset:{s*32}")
        for s in range(4):
            L(f"s_waitcnt lgkmcnt({6-2*s})")
            cc = "0" if (st == 0 and s == 0) else vr(vGa, 16)
            L(f"v_mfma_f32_32x32x16_bf16 {vr(vGa,16)}, {vr(vGw+4*s,4)}, {vr(vGx+4*s,4)}, {cc}")
        if st == 7:
            L(f"""
            s_mov_b32 s{sT3}, {f32(-1.4426950408889634)}
            s_lshl_b32 s{sT}, s{sRb}, 2
            s_add_u32 s{sT}, s{sT}, s{sJ}
            s_lshl_b32 s{sT}, s{sT}, 7
            s_add_u32 s{sT}, s{sT}, {WS_G}
            v_lshlrev_b32 v{vGt+1}, 2, v{vL}
            s_nop 7
            v_mul_f32 v{vGt}, s{sT3}, v{vGa}
            v_exp_f32 v{vGt}, v{vGt}
            s_nop 0
            v_add_f32 v{vGt}, 1.0, v{vGt}
            v_rcp_f32 v{vGt}, v{vGt}
            s_mov_b64 exec, 0xffffffff
            buffer_store_dword v{vGt}, v{vGt+1}, {WS}, s{sT} offen{SC}
            s_mov_b64 exec, -1
            """)
        L.label(f"L_ng{u}")
    def loader_seq(L, odd, vq, first, last):
        nst = 11 if odd else 12
        for st in range(first, last + 1):
            L(vq.need({st}))
            if FS and not F2 and st in (0, 2, 4, 7): SP.st(L, {0: 4, 2: 5, 4: 6, 7: 7}[st])
            if F2 and st in (7, 8, 9): SP.st(L, {7: 7, 8: 4, 9: 5}[st])
            L("s_barrier")
            for nx in ((2, 3) if st == 0 else (st + 3,)):
                if INIT <= nx < nst:
                    for _ in range(stage_dma(L, nx, odd)): vq.issue(nx)
            if st == 5:
                token_issue(L, vTk); vq.issue("tok")
            if odd and st == 8: relayout_issue(L, vq)
            if st < 8 and (odd or st < 7):
                if FS and SP.on: L("s_waitcnt lgkmcnt(0)")
                gate_block(L, st)
    loader_seq(l, False, vqc, 0, 6)
    l(f"s_cmp_lg_u32 s{sOdd}, 0")
    l("s_cbranch_scc1 L_lodd")
    def wst(L, va):
        for b, (sreg, base) in enumerate(((sWA, vHA), (sWB, vHB))):
            if b == 1:
                L(f"s_cmp_ge_u32 s{sBand}, 16")
                L("s_cbranch_scc1 L_now")
            for n in range(4):
                L(f"buffer_store_dwordx4 {vr(base+4*n,4)}, v{va}, {WS}, s{sreg} offen{SC}")
                if n < 3: L(f"s_add_u32 s{sreg}, s{sreg}, {144*1024}")
        L.label("L_now")
    def loader_tail(L, odd):
        vq = vqc.copy()
        loader_seq(L, odd, vq, 7, 9)
        L(vq.drain())
        if F2: SP.st(L, 6); L("s_waitcnt lgkmcnt(0)")
        if odd:
            for b in range(2):
                base = (vHA, vHB)[b]
                for n in range(4):
                    L(f"ds_read_b64_tr_b16 {vr(base+4*n,2)}, v{vRa} offset:{b*16384+n*64}")
                    L(f"ds_read_b64_tr_b16 {vr(base+4*n+2,2)}, v{vRa} offset:{b*16384+n*64+2048}")
                L("s_waitcnt lgkmcnt(0)")
        L("s_barrier")
        SP.st(L, 1)
        token_finish(L, vTk, None)
        L(attdec)
        L(f"v_mov_b32 v{vGt+2}, {GO}")
        L("s_barrier")
        if odd:
            L(f"s_cmp_lg_u32 s{sCg}, 1")
            L("s_cbranch_scc1 L_nofg")
            L(f"""
            s_lshl_b32 s{sT}, s{sRb}, 2
            s_add_u32 s{sT}, s{sT}, s{sJ}
            s_lshl_b32 s{sT}, s{sT}, 7
            s_add_u32 s{sT}, s{sT}, {FG}
            """)
            for x in flag_store(vTk, vTk + 2, sT): L(x)
            L.label("L_nofg")
            L(f"""
            s_mul_i32 s{sT}, s{sJ}, {4*144*1024}
            s_lshl_b32 s{sT2}, s{sBand}, 10
            s_add_u32 s{sT}, s{sT}, s{sT2}
            s_add_u32 s{sWA}, s{sT}, {WS_W}
            s_add_u32 s{sWB}, s{sWA}, {128*1024}
            s_lshl_b32 s{sT}, s{sJ}, 14
            s_lshl_b32 s{sT2}, s{sBand}, 7
            s_add_u32 s{sFl2}, s{sT}, s{sT2}
            s_add_u32 s{sFl2}, s{sFl2}, {FW}
            """)
            if HX: wst(L, vR)
        L(f"s_mov_b32 s{sDone}, {0 if odd and not HX else 1}")
        if False:
            def wst():
                for b, (sreg, base) in enumerate(((sSA, vHA), (sSB, vHB))):
                    if b == 1:
                        L(f"s_cmp_ge_u32 s{sBand}, 16")
                        L("s_cbranch_scc1 L_now")
                    for n in range(4):
                        L(f"buffer_store_dwordx4 {vr(base+4*n,4)}, v{vR}, {WS}, s{sreg} offen{SC}")
                        if n < 3: L(f"s_add_u32 s{sreg}, s{sreg}, {144*1024}")
                L.label("L_now")
            wst()
        uid[0] += 1; u = uid[0]
        L(f"s_cmp_lg_u32 s{sJ}, 0")
        L(f"s_cbranch_scc1 L_np{u}")
        L(f"""
        s_lshr_b32 s{sT}, s{sHead}, 2
        s_lshl_b32 s{sT}, s{sT}, 14
        s_add_u32 s{sT3}, s{sT}, {FQ}
        v_lshlrev_b32 v{vGt}, 7, v{vL}
        v_add_u32 v{vGt+1}, 8192, v{vGt}
        """)
        poll(L, [vD, vD + 2], [vGt, vGt + 1], sT3)
        L(f"ds_write_b64 v{vGt+2}, v[{vTk}:{vTk+1}]")
        SP.st(L, 2)
        L(f"""
        s_lshl_b32 s{sSo}, s{sHead}, 16
        s_lshl_b32 s{sT}, s{sNb}, 13
        s_add_u32 s{sSo}, s{sSo}, s{sT}
        """)
        def grp(ldsb, sadd):
            L(f"s_mov_b32 m0, {ldsb}")
            L(sadd)
            for j in range(4):
                L(f"buffer_load_dwordx4 v{vR}, {WS}, s{sSo} offen offset:{j*1024} sc1 lds")
        grp(QE, "s_nop 0")
        grp(QE + 4096, f"s_add_u32 s{sSo}, s{sSo}, 4096")
        for q in range(NE // 4):
            grp(KE + q * 4096, f"s_add_u32 s{sSo}, s{sKV}, {q*4096}")
            grp(VE + q * 4096, f"s_add_u32 s{sSo}, s{sKV}, {65536+q*4096}")
        L("s_waitcnt vmcnt(0)")
        L(f"s_branch L_nq{u}")
        L.label(f"L_np{u}")
        L(f"s_mov_b32 s{sT4}, 0")
        L.label(f"L_go{u}")
        L(f"""
        s_sleep 1
        ds_read_b64 v[{vD}:{vD+1}], v{vGt+2}
        s_add_u32 s{sT4}, s{sT4}, 1
        s_waitcnt lgkmcnt(0)
        v_cmp_ne_u64 vcc, s[{sTok}:{sTok+1}], v[{vD}:{vD+1}]
        s_cmp_gt_u32 s{sT4}, {SPIN_MAX * 16}
        s_cbranch_scc1 L_god{u}
        s_cbranch_vccnz L_go{u}
        """)
        L.label(f"L_god{u}")
        for q in range(6):
            if q == 5:
                L(f"s_cmp_lg_u32 s{sJ}, 1")
                L(f"s_cbranch_scc1 L_nw{u}")
            L(f"""
            s_add_u32 s{sT}, s{sJ}, {3*q - 1 if q else 0xffffffff}
            s_and_b32 s{sT2}, s{sT}, 1
            s_lshr_b32 s{sT}, s{sT}, 1
            s_lshl_b32 s{sT}, s{sT}, 12
            s_lshl_b32 s{sM}, s{sT2}, 15
            s_add_u32 s{sM}, s{sM}, s{sT}
            s_add_u32 s{sM}, s{sM}, {KM}
            s_mov_b32 m0, s{sM}
            s_lshl_b32 s{sSo}, s{sT2}, 16
            s_add_u32 s{sSo}, s{sSo}, s{sT}
            s_add_u32 s{sSo}, s{sSo}, s{sKV}
            s_add_u32 s{sSo}, s{sSo}, {NE*1024}
            """)
            for j in range(4 if q < 5 else 3):
                L(f"buffer_load_dwordx4 v{vR}, {WS}, s{sSo} offen offset:{j*1024} sc1 lds")
        L.label(f"L_nw{u}")
        L("s_waitcnt vmcnt(0)")
        L.label(f"L_nq{u}")
        if odd and HX:
            for x in flag_store(vTk, vTk + 2, sFl2): L(x)
        L("s_branch L_attL")
    le = Asm(); loader_tail(le, False)
    lo = Asm(); lo.label("L_lodd"); loader_tail(lo, True)
    vL16 = 3; vXA = 4; vPA = 8; vSA = 10; vVO = 11; vT = 1
    vE = 12; vPk = 20
    NW = 8
    vW = [28 + 4 * i for i in range(NW)]
    vAcc = [60, 76, 92, 108]
    vCt = 124
    vX = 128
    c = Asm()
    c.label("L_comp")
    c(f"""
    v_lshlrev_b32 v{vL16}, 4, v{vL}
    s_lshl_b32 s{sTT}, s{sRb}, 2
    s_add_u32 s{sTT}, s{sTT}, s{sWave}
    v_and_b32 v{vT}, 31, v{vL}
    v_lshlrev_b32 v{vE}, 7, v{vT}
    s_lshl_b32 s{sT}, s{sWave}, 12
    v_add_u32 v{vE}, s{sT}, v{vE}
    v_lshrrev_b32 v{vE+1}, 5, v{vL}
    v_bfe_u32 v{vE+2}, v{vL}, 1, 3
    """)
    for s in range(4):
        c(f"v_or_b32 v{vE+3}, {2*s}, v{vE+1}")
        c(f"v_xor_b32 v{vE+3}, v{vE+3}, v{vE+2}")
        c(f"v_lshl_add_u32 v{vXA+s}, v{vE+3}, 4, v{vE}")
    c(f"""
    v_bfe_u32 v{vE}, v{vL}, 4, 1
    v_lshlrev_b32 v{vE}, 5, v{vE}
    v_and_b32 v{vE+1}, 3, v{vL}
    v_lshl_add_u32 v{vE}, v{vE+1}, 3, v{vE}
    v_lshrrev_b32 v{vE+1}, 5, v{vL}
    v_lshlrev_b32 v{vE+1}, 3, v{vE+1}
    v_bfe_u32 v{vE+2}, v{vL}, 2, 2
    v_add_u32 v{vE+1}, v{vE+1}, v{vE+2}
    v_lshl_add_u32 v{vSA}, v{vE+1}, 6, v{vE}
    v_lshl_add_u32 v{vPA}, v{vE+1}, 7, v{vE}
    v_bfe_u32 v{vE+2}, v{vL}, 3, 1
    v_lshl_add_u32 v{vPA}, v{vE+2}, 6, v{vPA}
    v_xor_b32 v{vPA+1}, 64, v{vPA}
    v_bfe_u32 v{vE}, v{vL}, 4, 1
    v_lshlrev_b32 v{vE}, 17, v{vE}
    v_lshrrev_b32 v{vE+1}, 5, v{vL}
    v_lshl_add_u32 v{vE}, v{vE+1}, 8, v{vE}
    v_and_b32 v{vE+1}, 15, v{vL}
    v_lshl_add_u32 v{vVO}, v{vE+1}, 4, v{vE}
    v_mov_b32 v{vPk}, -1
    v_mov_b32 v{vPk+1}, -1
    v_mov_b32 v{vPk+2}, -1
    v_mov_b32 v{vPk+3}, -1
    s_lshl_b32 s{sT}, s{sTT}, 15
    s_lshl_b32 s{sT2}, s{sCg}, 11
    s_add_u32 s{sT}, s{sT}, s{sT2}
    s_add_u32 s{sT3}, s{sT}, {WS_O}
    s_mov_b32 s{sDone}, 0
    """)
    c(srdsetup)
    poison = f"""
    buffer_store_dwordx4 {vr(vPk,4)}, v{vL16}, {WS}, s{sT3} offen{SC}
    buffer_store_dwordx4 {vr(vPk,4)}, v{vL16}, {WS}, s{sT3} offen offset:1024{SC}
    """
    c(poison)
    c(f"""
    s_lshl_b32 s{sFl}, s{sG}, 14
    s_lshl_b32 s{sT}, s{sRb}, 10
    s_add_u32 s{sFl}, s{sFl}, s{sT}
    s_lshl_b32 s{sT}, s{sOdd}, 9
    s_add_u32 s{sFl}, s{sFl}, s{sT}
    s_lshl_b32 s{sT}, s{sWave}, 7
    s_add_u32 s{sFl}, s{sFl}, s{sT}
    s_add_u32 s{sFl}, s{sFl}, {FQ}
    s_lshl_b32 s{sFl2}, s{sTT}, 11
    s_lshl_b32 s{sT}, s{sCg}, 7
    s_add_u32 s{sFl2}, s{sFl2}, s{sT}
    s_add_u32 s{sFl2}, s{sFl2}, {FH}
    """)
    c(f"""
    s_lshl_b32 s53, s{sCg}, 18
    s_lshl_b32 s{sT2}, s{sTT}, 10
    s_add_u32 s53, s53, s{sT2}
    s_add_u32 s53, s53, {WS_KV + 65536}
    s_add_u32 s{sT}, s{sOdd}, 18
    s_lshl_b32 s54, s{sG}, s{sT}
    s_add_u32 s54, s54, s{sT2}
    s_mul_i32 s{sT}, s{sOdd}, {WS_KV}
    s_add_u32 s54, s54, s{sT}
    s_add_u32 s{sT}, s{sOdd}, 16
    s_lshl_b32 s55, 1, s{sT}
    """)
    pf_w1 = f"""
    s_lshr_b32 s{sT}, s2, 3
    s_lshl_b32 s{sT}, s{sT}, 2
    s_add_u32 s{sT}, s{sT}, s{sWave}
    v_lshrrev_b32 v{vE+2}, 3, v{vL}
    v_mul_u32_u24 v{vE+3}, 3584, v{vE+2}
    v_and_b32 v{vE+4}, 7, v{vL}
    v_lshl_add_u32 v{vE+3}, v{vE+4}, 7, v{vE+3}
    s_mul_i32 s{sT2}, s{sT}, {4*3584}
    s_lshr_b32 s{sT3}, s{sCg}, 2
    s_mul_i32 s{sT3}, s{sT3}, 896
    s_add_u32 s{sT2}, s{sT2}, s{sT3}
    s_mov_b64 exec, 0x7f7f7f7f
    buffer_load_dword v{vE+6}, v{vE+3}, s[28:31], s{sT2} offen
    s_mov_b64 exec, -1
    """
    pf_band = bandsrd + f"""
    v_lshrrev_b32 v{vE+2}, 1, v{vL}
    v_lshlrev_b32 v{vE+2}, 10, v{vE+2}
    v_and_b32 v{vE+4}, 1, v{vL}
    v_lshl_add_u32 v{vE+2}, v{vE+4}, 7, v{vE+2}
    s_add_u32 s{sT2}, s{sBand}, 96
    s_cmp_lg_u32 s{sOdd}, 0
    s_cselect_b32 s36, s4, s36
    s_cselect_b32 s37, s5, s37
    s_cselect_b32 s38, s6, s38
    s_cselect_b32 s{sT}, s{sT2}, s{sT}
    s_lshl_b32 s{sT}, s{sT}, 14
    s_lshl_b32 s{sT2}, s{sWave}, 8
    s_add_u32 s{sT}, s{sT}, s{sT2}
    s_mov_b64 exec, 0xffffffff
    buffer_load_dword v{vE+7}, v{vE+2}, s[36:39], s{sT} offen
    s_mov_b64 exec, -1
    """
    addr_regs = [vXA, vXA + 1, vXA + 2, vXA + 3, vPA, vPA + 1, vSA]
    PD = 6
    def silu_ep(acc, dst):
        f = [f"s_mov_b32 s{sT3}, {f32(-1.4426950408889634)}"]
        for h in range(2):
            for j in range(8): f.append(f"v_mul_f32 v{vE+j}, s{sT3}, v{acc+8*h+j}")
            for j in range(8): f.append(f"v_exp_f32 v{vE+j}, v{vE+j}")
            for j in range(8): f.append(f"v_add_f32 v{vE+j}, 1.0, v{vE+j}")
            for j in range(8): f.append(f"v_rcp_f32 v{vE+j}, v{vE+j}")
            for j in range(8): f.append(f"v_mul_f32 v{acc+8*h+j}, v{acc+8*h+j}, v{vE+j}")
        for j in range(8): f.append(f"v_cvt_pk_bf16_f32 v{dst+j}, v{acc+2*j}, v{acc+2*j+1}")
        return f
    class CS: pass
    S = CS()
    def lds_addr(out, reg, byte):
        w = S.win[reg]
        if not (0 <= byte - w <= 65535 - 512):
            nw_ = (byte // 32768) * 32768
            out.append(f"v_add_u32 v{reg}, {nw_ - w}, v{reg}" if nw_ - w >= 0 else f"v_subrev_u32 v{reg}, {w - nw_}, v{reg}")
            S.win[reg] = nw_; w = nw_
        return byte - w
    def units(odd):
        U = []
        for st in range(8):
            for s in range(4):
                ks = st * 4 + s
                U.append(dict(st=st, ks=ks, acc=2, kind="single", base=slot(st) + BO + s * 1024, swap=True, x=True))
                for nt in range(2):
                    U.append(dict(st=st, ks=ks, acc=nt, kind="pair", nt=nt, base=slot(st) + AO + s * 2048))
        p2 = [3, 2, 0, 1]
        for t in range(3 if odd else 4):
            for ks in range(32):
                if odd and t == 2:
                    U.append(dict(st=10, ks=ks, acc=p2[t], kind="single", base=slot(10) + ks * 1024))
                else:
                    st = 8 + 2 * (t // 2) + ks // 16
                    U.append(dict(st=min(st, 10), ks=ks, acc=p2[t], kind="pair", nt=t % 2, base=slot(st) + (ks % 16) * 2048))
        for i, u in enumerate(U): u["i"] = i
        return U
    QB = P("qb", 44)
    fchk = {}
    def emit_read(out, u):
        b = u["st"]
        if b not in S.bd:
            out.append("s_barrier"); S.bd.add(b)
        if u.get("x"):
            s = u["ks"] % 4
            off = lds_addr(out, vXA + s, slot(u["st"]) + XO)
            out.append(f"ds_read_b128 {vr(vX+4*u['ks'],4)}, v{vXA+s} offset:{off}")
            S.lq.issue(("x", u["ks"]))
        w = vW[u["i"] % NW]
        r, d = (vPA + u["nt"], 512) if u["kind"] == "pair" else (vSA, 256)
        off = lds_addr(out, r, u["base"])
        out.append(f"ds_read_b64_tr_b16 {vr(w,2)}, v{r} offset:{off}"); S.lq.issue(("w", u["i"]))
        out.append(f"ds_read_b64_tr_b16 {vr(w+2,2)}, v{r} offset:{off+d}"); S.lq.issue(("w", u["i"]))
    def group(u, U):
        g = []
        tags = {("w", u["i"]), ("x", u["ks"])} if u["i"] < 96 else {("w", u["i"])}
        if u["i"] % 2 == 0 and u["i"] + 1 < len(U): tags.add(("w", u["i"] + 1))
        w = S.lq.need(tags)
        if w: g.append(w)
        acc = vAcc[u["acc"]]; cc = "0" if u["ks"] == 0 else vr(acc, 16)
        wr = vr(vW[u["i"] % NW], 4); xr = vr(vX + 4 * u["ks"], 4)
        A, B = (xr, wr) if u.get("swap") else (wr, xr)
        g.append(f"v_mfma_f32_32x32x16_bf16 {vr(acc,16)}, {A}, {B}, {cc}")
        if u["i"] + PD < len(U): emit_read(g, U[u["i"] + PD])
        return g
    lines = lambda s: [x.strip() for x in s.strip("\n").split("\n")]
    tokA = Asm(); token_issue(tokA, vCt)
    tokB = Asm(); token_finish(tokB, vCt, "s_waitcnt vmcnt(0)")
    fchk[QB] = ["s_waitcnt vmcnt(0)"] + flag_store(vCt, vCt + 2, sFl) + ([SP.line(5), "s_waitcnt lgkmcnt(0)"] if FS and SP.on else [])
    hdst = f"""
    s_mul_i32 s{sT}, s{sTT}, {112*1024}
    s_add_u32 s{sT}, s{sT}, {WS_H}
    s_lshl_b32 s{sSA}, s{sFA}, 11
    s_add_u32 s{sSA}, s{sSA}, s{sT}
    s_lshl_b32 s{sSB}, s{sFB}, 11
    s_add_u32 s{sSB}, s{sSB}, s{sT}
    """
    def hs1(base, sreg, off): return f"buffer_store_dwordx4 {vr(base,4)}, v{vL16}, {WS}, s{sreg} offen offset:{off}{SC}"
    def front(odd):
        U = units(odd)
        S.win = {r: 0 for r in addr_regs}; S.lq = Q("lgkmcnt", 15); S.bd = set()
        pre = []
        for i in range(PD): emit_read(pre, U[i])
        G = []
        for u in U:
            g = group(u, U); i = u["i"]
            if "noc" in exp and i < 90: g = [x for x in g if "s_barrier" in x or x.startswith("v_add") or x.startswith("v_subrev")]
            if "nom" in exp and i < 90: g = [x for x in g if "mfma" not in x]
            if i == P("pw", 12) and "nopw" not in exp: g += lines(pf_w1)
            if i == P("pb", 40) and "nopb" not in exp: g += lines(pf_band)
            if i == 60: g += [x.strip() for x in tokA.lines]
            if i == 92: g += [x.strip() for x in tokB.lines]
            if i == 95 and SP.on: g += [SP.line(1), S.lq.drain()]
            if F2 and i in (96 + 31, 96 + 57): g += [SP.line(6 if i == 96 + 31 else 7), S.lq.drain()]
            G.append(g)
        G[0] = pre + G[0]
        a2 = vAcc[2]
        f = [f"s_cmp_lg_u32 s{sOdd}, 0", f"s_cselect_b32 s{sT3}, 1.0, {f32(QSCALE)}"]
        for j in range(8): f.append(f"v_cvt_pk_bf16_f32 v{a2+j}, v{a2+2*j}, v{a2+2*j+1}")
        f += [f"buffer_store_dwordx4 {vr(a2,4)}, v{vVO}, {WS}, s53 offen{SC}",
              f"buffer_store_dwordx4 {vr(a2+4,4)}, v{vVO}, {WS}, s53 offen offset:512{SC}"]
        for tq in range(2):
            acc = vAcc[tq]; pk = vPk if tq == 0 else vE
            for j in range(16): f.append(f"v_mul_f32 v{acc+j}, s{sT3}, v{acc+j}")
            for j in range(8): f.append(f"v_cvt_pk_bf16_f32 v{pk+j}, v{acc+2*j}, v{acc+2*j+1}")
            f.append(f"buffer_store_dwordx4 {vr(pk,4)}, v{vL16}, {WS}, s54 offen{SC}")
            f.append("s_add_u32 s54, s54, s55")
            f.append(f"buffer_store_dwordx4 {vr(pk+4,4)}, v{vL16}, {WS}, s54 offen{SC}")
            f.append("s_add_u32 s54, s54, s55")
        if FS and SP.on: f += [SP.line(4), "s_waitcnt lgkmcnt(0)"]
        spread(G, f, 96 + 2, 96 + 9)
        spread(G, silu_ep(vAcc[3], vHA), 96 + 35, 96 + 63)
        spread(G, silu_ep(vAcc[2], vHA + 8), 96 + 67, 96 + 95)
        if not odd: spread(G, silu_ep(vAcc[0], vHB), 96 + 99, 96 + 127)
        G[96 + QB] += fchk[QB]
        G[96 + 63].append("s_barrier")
        G[96 + 20] += lines(hdst)
        if HY:
            for q in range(2): G[96 + 66 + 12 * q].append(hs1(vHA + 4 * q, sSA, q * 1024))
            if not odd:
                for q in range(2): G[96 + 98 + 12 * q].append(hs1(vHA + 8 + 4 * q, sSA, 2048 + q * 1024))
        if HX:
          for q in range(2): G[96 + 65 + 2 * q].append(hs1(vHA + 4 * q, sSA, q * 1024))
        if HX and not odd:
            for q in range(2): G[96 + 96 + 2 * q].append(hs1(vHA + 8 + 4 * q, sSA, 2048 + q * 1024))
        return G
    Ge = front(False); Go = front(True)
    ncom = 0
    while Ge[ncom] == Go[ncom]: ncom += 1
    for g in Ge[:ncom]:
        for x in g: emit(c, x)
    c(f"s_cmp_lg_u32 s{sOdd}, 0")
    c("s_cbranch_scc1 L_codd")
    ce = Asm()
    for g in Ge[ncom:]:
        for x in g: emit(ce, x)
    SP.st(ce, 2)
    ce(attdec)
    ce("s_nop 0")
    for q in range(2 if HX else 0): ce(hs1(vHB + 4 * q, sSB, q * 1024))
    for x in silu_ep(vAcc[1], vHB + 8): ce(x)
    for q in range(2 if HX else 0): ce(hs1(vHB + 8 + 4 * q, sSB, 2048 + q * 1024))
    ce("s_branch L_attC")
    co = Asm()
    co.label("L_codd")
    for g in Go[ncom:]:
        for x in g: emit(co, x)
    SP.st(co, 2)
    co(attdec)
    co("s_nop 0")
    for q in range(2 if HX or HY else 0): co(hs1(vHA + 8 + 4 * q, sSA, 2048 + q * 1024))
    for x in silu_ep(vAcc[0], vHB): co(x)
    for q in range(2 if HX else 0): co(hs1(vHB + 4 * q, sSB, q * 1024))
    vL16 = 1; vKA = 4; vVA = 3; vT = 5; vT2 = 6; vM = 7
    vQ = 8; vK = [12, 16]; vV = [[20, 24], [28, 32]]; vP = 36; vS = [60, 76]; vO = 92
    vFA = 108; NFB = 4
    vFB = [44, 152, 164, 140]
    vWo = 176
    vGq = 240; vGf = 241; vTk2 = 242
    vPl = 246; vPo = 252; vVB = 253
    sVM = 30; sW0 = 24; sW1 = 25; sH = 26; sD = 27; sWo = 28
    sLK = 20; sSK = 21; sX = 22
    NT = 64
    B1, B2 = NE - 2, 42
    PI, PT, F0 = P("pi", 16), P("pt", 18), P("fz", 21)
    setup = f"""
    v_lshlrev_b32 v{vL16}, 4, v{vL}
    v_mov_b32 v{vTk2}, s{sTok}
    v_mov_b32 v{vTk2+1}, s{sTok+1}
    v_mov_b32 v{vTk2+2}, 0
    s_lshr_b32 s{sD}, s{sWave}, 1
    s_mul_i32 s{sT3}, s{sD}, {28*1024}
    s_mul_i32 s{sW0}, s{sNb}, {2*144*1024}
    s_add_u32 s{sW0}, s{sW0}, {WS_W}
    s_lshl_b32 s{sT}, s{sD}, 13
    s_add_u32 s{sWo}, s{sW0}, s{sT}
    s_add_u32 s{sW0}, s{sW0}, s{sT3}
    s_add_u32 s{sW0}, s{sW0}, {32*1024}
    s_add_u32 s{sW1}, s{sW0}, {144*1024}
    s_lshl_b32 s{sH}, s{sHead}, 1
    s_and_b32 s{sT2}, s{sWave}, 1
    s_add_u32 s{sTT}, s{sH}, s{sT2}
    s_mul_i32 s{sH}, s{sTT}, {112*1024}
    s_add_u32 s{sH}, s{sH}, s{sT3}
    s_add_u32 s{sH}, s{sH}, {WS_H}
    v_add_u32 v{vKA}, {KE}, v{vL16}
    v_and_b32 v{vT}, 15, v{vL}
    v_lshlrev_b32 v{vT}, 4, v{vT}
    v_and_b32 v{vT2}, 32, v{vL}
    v_lshlrev_b32 v{vT2}, 3, v{vT2}
    v_add_u32 v{vVA}, v{vT}, v{vT2}
    v_add_u32 v{vVB}, {VM}, v{vVA}
    v_add_u32 v{vVA}, {VE}, v{vVA}
    s_mov_b32 s{sVM}, 0x0000ffff
    s_mov_b32 s{sVM+1}, 0x0000ffff
    s_mov_b32 s{sT}, 0x3f803f80
    v_and_b32 v{vT}, 27, v{vL}
    v_cmp_eq_u32 vcc, 16, v{vT}
    v_mov_b32 v{vT2}, s{sT}
    s_lshl_b32 s{sT}, s{sWave}, 10
    v_cndmask_b32 v{vT}, 0, v{vT2}, vcc
    v_add_u32 v{vT2}, s{sT}, v{vKA}
    """ + "".join(f"v_mov_b32 v{vV[b][g]+j}, v{vT}\n" for b in range(2) for g in range(2) for j in range(4))
    pofs = f"""
    s_lshr_b32 s{sT}, s{sNb}, 1
    s_lshl_b32 s{sT}, s{sT}, 14
    s_add_u32 s{sT}, s{sT}, {FW - WS_F}
    s_mul_i32 s{sT2}, s{sD}, 28
    s_add_u32 s{sT2}, s{sT2}, 32
    v_add_u32 v{vPo}, s{sT2}, v{vL}
    v_and_b32 v{vPo}, 127, v{vPo}
    v_lshlrev_b32 v{vPo}, 7, v{vPo}
    v_add_u32 v{vPo}, s{sT}, v{vPo}
    v_lshlrev_b32 v{vM}, 7, v{vL}
    s_lshl_b32 s{sT2}, s{sD}, 10
    s_add_u32 s{sT}, s{sT}, s{sT2}
    s_sub_u32 s{sT}, s{sT}, {28*128}
    s_mov_b32 exec_lo, 0xf0000000
    s_mov_b32 exec_hi, 0x0000000f
    v_add_u32 v{vPo}, s{sT}, v{vM}
    s_lshl_b32 s{sT}, s{sTT}, 11
    s_add_u32 s{sT}, s{sT}, {FH - WS_F - 36*128}
    s_mov_b32 exec_lo, 0
    s_mov_b32 exec_hi, 0x000ffff0
    v_add_u32 v{vPo}, s{sT}, v{vM}
    s_mov_b64 exec, -1
    s_lshl_b32 s{sT}, s{sTT}, 7
    s_add_u32 s{sT}, s{sT}, {FG - WS_F}
    v_writelane_b32 v{vPo}, s{sT}, 52
    s_lshl_b32 s{sT}, s{sQb}, 7
    s_add_u32 s{sT}, s{sT}, {FG - WS_F}
    v_writelane_b32 v{vPo}, s{sT}, 53
    """
    class TS: pass
    X = TS()
    def readK(t, i):
        if i < NE: t(f"ds_read_b128 {vr(vK[i%2],4)}, v{vKA} offset:{i*1024}")
        elif i < NK: t(f"ds_read_b128 {vr(vK[i%2],4)}, v{vKA} offset:{KM-KE+(i-NE)*1024}")
        else: t(f"ds_read_b128 {vr(vK[i%2],4)}, v{vL16} offset:{KL+(i-NK)*1024}")
        X.lq.issue(("k", i))
    def readV(t, i):
        r, o = (vVA, i * 1024) if i < NE else ((vVB, (i - NE) * 1024) if i < NV else (vVA, (i - NV) * 1024))
        if i == NE: t(f"v_subrev_u32 v{vVA}, {VE - VL}, v{vVA}")
        t(f"s_mov_b64 exec, s[{sVM}:{sVM+1}]")
        t(f"ds_read_b128 {vr(vV[i%2][0],4)}, v{r} offset:{o}"); X.lq.issue(("v", i, 0))
        t(f"ds_read_b128 {vr(vV[i%2][1],4)}, v{r} offset:{o+512}"); X.lq.issue(("v", i, 1))
        t(f"s_mov_b64 exec, -1")
    def mS(t, i):
        t(X.lq.need({("k", i), "q"} | (set() if "ow" in exp else {("v", i - 1, 0), ("v", i - 1, 1)})))
        t(f"v_mfma_f32_32x32x16_bf16 {vr(vS[i%2],16)}, {vr(vK[i%2],4)}, {vr(vQ,4)}, 0")
    def mPV(t, i, g, first=False):
        t(X.lq.need({("v", i, g)}))
        cc = "0" if first else vr(vO, 16)
        t(f"v_mfma_f32_32x32x16_bf16 {vr(vO,16)}, {vr(vV[i%2][g],4)}, {vr(vP+4*g,4)}, {cc}")
    ntile = NT - F0
    fs = [0] * NT
    for n in range(56): fs[F0 + n * ntile // 56] += 1
    assert max(fs) <= 2
    floads = [(j, w) for j in range(28) for w in (0, 2, 1)]
    def fload(t, j, which):
        b = vFB[j % NFB] + 4 * which
        s = (sW0, sW1, sH)[which]
        if "xl0" in exp or ("xl2" in exp and which == 1): return
        t(f"buffer_load_dwordx4 {vr(b,4)}, v{vL16}, {WS}, s{s} offen offset:{(j%4)*1024} sc1")
        if j % 4 == 3: t(f"s_add_u32 s{s}, s{s}, 4096")
        X.vq.issue(("f", j, which))
    def emit_floads(t, k):
        for _ in range(k):
            if X.nfl >= len(floads): return
            j, w = floads[X.nfl]
            if j >= NFB and X.nf < 2 * (j - NFB) + (1 if w == 0 else 2): return
            fload(t, j, w); X.nfl += 1
    def fmfma(t):
        n = X.nf; j, i = n // 2, n % 2
        t(X.vq.need({("f", j, i), ("f", j, 2)}))
        b = vFB[j % NFB]
        cc = "0" if j == 0 else vr(vFA + 16 * i, 16)
        if "xm" not in exp: t(f"v_mfma_f32_32x32x16_bf16 {vr(vFA+16*i,16)}, {vr(b+4*i,4)}, {vr(b+8,4)}, {cc}")
        X.nf += 1
    def woload(t, k):
        if k == 8: t(f"s_add_u32 s{sWo}, s{sWo}, {144*1024 - 8192}")
        t(f"buffer_load_dwordx4 {vr(vWo+4*k,4)}, v{vL16}, {WS}, s{sWo} offen offset:{(k%4)*1024} sc1")
        if k % 4 == 3: t(f"s_add_u32 s{sWo}, s{sWo}, 4096")
        X.vq.issue("wo")
    JN = P("jn", 14)
    WO0 = P("wo", 28)
    pr = {0: 3, P("pa", 26): 2, P("pb2_", 36): 1, B2 - 1: 0, B2: 3, P("pd", 55): 2, P("pe", 60): 1, P("pf", 62): 0}
    prC = dict(pr); prL = dict(pr)
    if KB1:
        prC.update({6: 2, 8: 1, 9: 0, B1: 3}); prL.update({6: 2, 8: 1, 9: 0, B1: 3})
    if "pl" in exp: prC[0] = 2; pr[JN] = 3
    if "pz" in exp:
        for d in (prC, prL): d.update({JN * 1 // 4 + 1: 2, JN * 2 // 4 + 1: 1, JN * 3 // 4 + 1: 0})
        pr[JN] = 3
    assert PI - 2 >= JN
    def tile(t, i, hook, pr=pr):
        Sx = vS[i % 2]
        E = lambda j: t(f"v_exp_f32 v{Sx+j}, v{Sx+j}")
        C = lambda j: t(f"v_cvt_pk_bf16_f32 v{vP+j}, v{Sx+2*j}, v{Sx+2*j+1}")
        if TSL and i in TSL and i < JN: SP.st(t, [1, 2, 4, 5, 6, 7][TSL.index(i)]); t(X.lq.drain())
        if i in pr: t(f"s_setprio {pr[i]}")
        if i + 1 < NT: mS(t, i + 1)
        if i + 2 < NT: readK(t, i + 2)
        if i == 0: t("s_nop 7")
        if fs[i]:
            E(0); E(1); E(2); C(0); E(3)
            mPV(t, i - 1, 1)
            if i + 1 < NT: readV(t, i + 1)
            E(4); C(1); E(5); E(6); C(2); E(7)
            fmfma(t)
            emit_floads(t, 1)
            E(8); C(3); E(9); E(10); E(11); C(4)
            mPV(t, i, 0)
            emit_floads(t, 1)
            hook(t, i)
            E(12); C(5); E(13)
            if fs[i] > 1:
                fmfma(t); emit_floads(t, 1)
            E(14); E(15); C(6)
            if i == NT - 1: t(f"v_sub_f32 v{vGf}, 1.0, v{vGf}")
            C(7)
        else:
            E(0); E(1); E(2); C(0); E(3); E(4); C(1)
            if i > 0: mPV(t, i - 1, 1)
            readV(t, i + 1)
            E(5); E(6); C(2); E(7); E(8); C(3); E(9); E(10)
            mPV(t, i, 0, first=(i == 0))
            hook(t, i)
            E(11); C(4); E(12); C(5); E(13); E(14); E(15); C(6)
            C(7)
    def head(t, isL):
        X.vq = Q("vmcnt", 63); X.lq = Q("lgkmcnt", 15); X.nf = 0; X.nfl = 0
        t(setup)
        if isL:
            t(f"""
            s_sub_u32 s{sT}, s{sWave}, 4
            s_mul_i32 s{sLK}, s{sT}, 5120
            s_add_u32 s{sSK}, s{sKV}, s{sLK}
            """)
        t("s_barrier")
        SP.st(t, 3)
        if SP.on: t("s_waitcnt lgkmcnt(0)")
        t(f"ds_read_b128 {vr(vQ,4)}, v{vT2} offset:{QE-KE}"); X.lq.issue("q")
        readK(t, 0); readK(t, 1); readV(t, 0)
        mS(t, 0)
    tC = Asm(); tC.label("L_attC")
    head(tC, False)
    HS = P("hs", 1)
    def hookC(t, i):
        k = -1 if HX or HY else i - HS
        if HY and i in (HS, HS + 2): t(hs1(vHB + 2 * (i - HS), sSB, (i - HS) * 512))
        if HY and i == HS + 4:
            t(f"s_cmp_lg_u32 s{sOdd}, 0")
            t("s_cbranch_scc1 L_noh4")
            for q in range(2): t(hs1(vHB + 8 + 4 * q, sSB, (2 + q) * 1024))
            t.label("L_noh4")
        if k in (0, 1):
            for q in range(2): t(hs1(vHA + 8 * k + 4 * q, sSA, (2 * k + q) * 1024))
        if k == 2:
            for q in range(2): t(hs1(vHB + 4 * q, sSB, q * 1024))
        if k == 3:
            t(f"s_cmp_lg_u32 s{sOdd}, 0")
            t("s_cbranch_scc1 L_noh4")
            for q in range(2): t(hs1(vHB + 8 + 4 * q, sSB, (2 + q) * 1024))
            t.label("L_noh4")
        if i == P("hf", 8 if HX else JN - 1):
            t("s_waitcnt vmcnt(0)")
            for x in flag_store(vTk2, vTk2 + 2, sFl2): t(x)
            if PS: SP.st(t, 1); t(X.lq.drain())
    for i in range(JN):
        if i == B1:
            if KB1: tC("s_barrier")
            if SP.on and not FS and not TSL: SP.st(tC, 4); tC(X.lq.drain())
        tile(tC, i, hookC, prC)
    tC("s_branch L_join")
    lqC = list(X.lq.q)
    tL = Asm(); tL.label("L_attL")
    head(tL, True)
    dm = []
    for kv, n in ((0, 5), (1, 6)):
        for j in range(n):
            Lx = []
            if j % 4 == 0:
                Lx += [f"s_add_u32 s{sX}, s{sLK}, {(KL, VL)[kv] + j*1024}", f"s_mov_b32 m0, s{sX}",
                       f"s_add_u32 s{sX}, s{sSK}, {(NK*1024, 65536 + NV*1024)[kv] + j*1024}"]
            Lx.append(f"buffer_load_dwordx4 v{vL16}, {WS}, s{sX} offen offset:{(j%4)*1024} sc1 lds")
            dm.append(("c2", Lx))
    def emit_dma(t, n):
        while n > 0 and dm:
            tag, Lx = dm.pop(0)
            for x in Lx: t(x)
            X.vq.issue(tag); n -= 1
    D0 = P("dz", 2)
    def hookL(t, i):
        if i >= D0: emit_dma(t, 2 if JN - i <= len(dm) - 1 else 1)
        if i == P("ws", 1) and not HX:
            assert i < D0
            t(f"s_cmp_lg_u32 s{sDone}, 0")
            t("s_cbranch_scc1 L_now")
            wst(t, vL16)
        if i == P("wf", JN - 1) and not HX:
            for x in flag_check(vTk2, sFl2, block=True, stamp=(1 if PS else None), cnt=len(X.vq.q)): emit(t, x)
    for i in range(JN):
        if i == B1 and KB1:
            tL(f"s_waitcnt vmcnt({len(X.vq.q)})")
            tL("s_barrier")
        if i == B1 and SP.on and not FS and not TSL: SP.st(tL, 4); tL(X.lq.drain())
        tile(tL, i, hookL, prL)
    assert not dm
    assert PS or lqC == X.lq.q
    t = Asm(); t.label("L_join")
    vq = X.vq
    def hookJ(t, i):
        if i == PI - 2: t(pofs)
        if i == PI:
            t(f"""
            s_mov_b32 s{sT2}, {WS_F}
            s_mov_b32 s4, -1
            s_mov_b32 s5, 0x003fffff
            s_mov_b64 exec, s[4:5]
            buffer_load_dwordx2 v[{vPl}:{vPl+1}], v{vPo}, {WS}, s{sT2} offen sc1
            s_mov_b64 exec, -1
            """)
            vq.issue("p")
        if i == PT:
            if PS: SP.st(t, 5); t(X.lq.drain())
            t(vq.need({"p"}))
            t("s_mov_b64 exec, s[4:5]")
            t(f"v_cmp_ne_u64 vcc, s[{sTok}:{sTok+1}], v[{vPl}:{vPl+1}]")
            t("s_mov_b64 exec, -1")
            t("s_nop 0")
            t("s_cbranch_vccnz L_pslow")
            t.label("L_pok")
            ool.label("L_pslow")
            poll(ool, [vPl], [vPo], sT2, mask="s[4:5]", sleep=P("sl", 8))
            ool("s_branch L_pok")
            if PS: SP.st(t, 6); t(X.lq.drain())
            t(f"""
            v_and_b32 v{vPo}, 31, v{vL}
            v_lshlrev_b32 v{vPo}, 2, v{vPo}
            s_lshl_b32 s{sT}, s{sTT}, 7
            s_add_u32 s{sT}, s{sT}, {WS_G}
            s_lshl_b32 s{sT2}, s{sQb}, 7
            s_add_u32 s{sT2}, s{sT2}, {WS_G}
            """)
        if PT <= i < F0: emit_floads(t, (9 + F0 - PT - 1) // (F0 - PT))
        if i == F0:
            t(f"buffer_load_dword v{vGf}, v{vPo}, {WS}, s{sT} offen sc1")
            t(f"buffer_load_dword v{vGq}, v{vPo}, {WS}, s{sT2} offen sc1")
            vq.issue("g"); vq.issue("g")
        if WO0 <= i < WO0 + 32 and (i - WO0) % 2 == 0: woload(t, (i - WO0) // 2)
    for i in range(JN, NT):
        if i == B2:
            t(vq.need({"c2"})); t("s_barrier")
        if TSL and i in TSL: SP.st(t, [1, 2, 4, 5, 6, 7][TSL.index(i)]); t(X.lq.drain())
        if SP.on and i in (B1, B2) and not FS and not PS and not TSL:
            SP.st(t, {B1: 4, B2: 5}[i]); t(X.lq.drain())
        if PS and i == 24: SP.st(t, 7); t(X.lq.drain())
        tile(t, i, hookJ)
    assert X.nf == 56 and X.nfl == len(floads)
    t("s_nop 1")
    mPV(t, NT - 1, 1)
    t("s_setprio 3")
    for r in range(12): t(f"v_mul_f32 v{vFA+r}, v{vFA+r}, v{vGf}")
    if not FS and not PS and not TSL: SP.st(t, 6)
    t(f"""
    v_add_f32 v{vT}, abs(v{vO}), abs(v{vO+1})
    v_add_f32 v{vT2}, abs(v{vO+2}), abs(v{vO+3})
    v_add_f32 v{vT}, v{vT}, abs(v{vO+4})
    v_add_f32 v{vT2}, v{vT2}, abs(v{vO+5})
    v_add_f32 v{vT}, v{vT}, abs(v{vO+6})
    v_add_f32 v{vT2}, v{vT2}, abs(v{vO+7})
    v_add_f32 v{vT}, v{vT}, v{vT2}
    s_mov_b32 s{sT}, 0x7f000000
    s_mov_b32 s{sT2}, {(127+80) << 23}
    s_mov_b32 s{sT3}, {(127-80) << 23}
    v_cmp_nle_f32 vcc, v{vT}, s{sT}
    v_cmp_nle_f32 s[20:21], v{vO+8}, s{sT2}
    v_cmp_nge_f32 s[22:23], v{vO+8}, s{sT3}
    s_nop 0
    s_or_b64 vcc, vcc, s[20:21]
    s_or_b64 vcc, vcc, s[22:23]
    s_cbranch_vccnz L_slow
    """)
    t.label("L_fin")
    vOf = 140; vAw = vS[0]
    t(f"""
    v_rcp_f32 v{vT}, v{vO+8}
    s_lshl_b32 s{sT}, s{sQb}, 15
    s_lshl_b32 s{sT2}, s{sHead}, 10
    s_add_u32 s{sT}, s{sT}, s{sT2}
    s_add_u32 s{sT}, s{sT}, {WS_O}
    v_mul_f32 v{vT}, v{vT}, v{vGq}
    """)
    for j in range(8): t(f"v_mul_f32 v{vO+j}, v{vO+j}, v{vT}")
    for j in range(4): t(f"v_cvt_pk_bf16_f32 v{vP+j}, v{vO+2*j}, v{vO+2*j+1}")
    RED = 65536
    t(f"""
    buffer_store_dwordx4 {vr(vP,4)}, v{vL16}, {WS}, s{sT} offen sc1
    s_lshl_b32 s{sH}, s{sTT}, 15
    s_lshl_b32 s{sT2}, s{sD}, 13
    s_add_u32 s{sH}, s{sH}, s{sT2}
    s_add_u32 s{sH}, s{sH}, {WS_O}
    s_add_u32 s{sW0}, s{sH}, 4096
    s_mov_b32 s{sT4}, 0
    """)
    if not FS and not PS and not TSL: SP.st(t, 7)
    def oload(L, k):
        L(f"buffer_load_dwordx4 {vr(vOf+4*k,4)}, v{vL16}, {WS}, s{sH if k < 4 else sW0} offen offset:{(k%4)*1024} sc1")
    for r in range(12, 32): t(f"v_mul_f32 v{vFA+r}, v{vFA+r}, v{vGf}")
    t("s_barrier")
    for k in range(8): oload(t, k)
    t(f"""
    s_and_b32 s{sT2}, s{sWave}, 1
    s_lshl_b32 s{sT2}, s{sT2}, 15
    s_add_u32 s{sT2}, s{sT2}, {RED}
    s_lshl_b32 s{sT3}, s{sD}, 13
    s_add_u32 s{sT3}, s{sT3}, s{sT2}
    v_add_u32 v{vT}, s{sT3}, v{vL16}
    s_lshl_b32 s{sT3}, s{sD}, 11
    s_add_u32 s{sT3}, s{sT3}, s{sT2}
    v_add_u32 v{vT2}, s{sT3}, v{vL16}
    v_and_b32 v{vPo}, 31, v{vL}
    v_lshlrev_b32 v{vPo}, 10, v{vPo}
    v_lshrrev_b32 v{vM}, 5, v{vL}
    v_lshl_add_u32 v{vPo}, v{vM}, 4, v{vPo}
    s_lshl_b32 s{sT}, s{sTT}, 15
    s_lshl_b32 s{sT2}, s{sNb}, 7
    s_add_u32 s{sT}, s{sT}, s{sT2}
    s_lshl_b32 s{sT2}, s{sD}, 5
    s_add_u32 s{sT}, s{sT}, s{sT2}
    s_mov_b64 s[20:21], -1
    v_lshlrev_b32 v{vP+4}, 10, v{vL}
    v_add_u32 v{vP+4}, 1020, v{vP+4}
    """)
    for k in range(8):
        t.label(f"L_o{k}")
        t(f"""
        s_waitcnt vmcnt({7-k})
        v_max3_u32 v{vM}, v{vOf+4*k}, v{vOf+4*k+1}, v{vOf+4*k+2}
        v_max_u32 v{vM}, v{vM}, v{vOf+4*k+3}
        v_cmp_eq_u32 vcc, -1, v{vM}
        s_nop 0
        s_and_b64 vcc, vcc, s[20:21]
        s_cbranch_vccnz L_ow{k}
        """)
        for i in range(2):
            t(f"v_mfma_f32_32x32x16_bf16 {vr(vFA+16*i,16)}, {vr(vWo+32*i+4*k,4)}, {vr(vOf+4*k,4)}, {vr(vFA+16*i,16)}")
        ool.label(f"L_ow{k}")
        ool("s_waitcnt vmcnt(0)")
        if k < 7:
            regs = list(range(vOf + 4 * k + 4, vOf + 32))
            ool(f"v_max_u32 v{vM}, v{regs[0]}, v{regs[1]}")
            for q in range(2, len(regs), 2): ool(f"v_max3_u32 v{vM}, v{vM}, v{regs[q]}, v{regs[q+1]}")
            ool(f"""
            v_cmp_eq_u32 vcc, -1, v{vM}
            s_nop 1
            s_cbranch_vccz L_of{k}
            """)
            ool.label(f"L_ol{k}")
            ool(f"""
            s_sleep {P('os', 3)}
            s_mov_b64 exec, {(0xff << k) & 0xff}
            buffer_load_dword v{vM}, v{vP+4}, {WS}, s{sH} offen sc1
            s_add_u32 s{sT4}, s{sT4}, 1
            s_cmp_gt_u32 s{sT4}, {SPIN_MAX // 4}
            s_cselect_b64 s[20:21], 0, -1
            s_waitcnt vmcnt(0)
            v_cmp_eq_u32 vcc, -1, v{vM}
            s_mov_b64 exec, -1
            s_nop 0
            s_and_b32 s22, vcc_lo, s20
            s_bitcmp0_b32 s22, {k}
            s_cbranch_scc1 L_or{k}
            s_cmp_lg_u32 s22, {1 << k}
            s_cbranch_scc1 L_ol{k}
            """)
            ool.label(f"L_or{k}")
            for q in range(k, 8): oload(ool, q)
            ool(f"s_branch L_o{k}")
            ool.label(f"L_of{k}")
        ool(f"s_sleep {P('of', 1)}")
        oload(ool, k)
        ool(f"""
        s_add_u32 s{sT4}, s{sT4}, 1
        s_cmp_gt_u32 s{sT4}, {SPIN_MAX // 4}
        s_cselect_b64 s[20:21], 0, -1
        s_waitcnt vmcnt(0)
        s_branch L_o{k}
        """)
    SP.st(t, 8)
    if SP.on: t("s_waitcnt lgkmcnt(0)")
    t("s_nop 10")
    for u in range(8):
        if u == 4: t("s_nop 0")
        t(f"ds_write_b128 v{vT}, {vr(vFA+4*u,4)} offset:{u*1024}")
    t("s_waitcnt lgkmcnt(0)")
    t("s_barrier")
    vR = vOf
    for p in range(4):
        for u in range(2):
            t(f"ds_read_b128 {vr(vR+16*u+4*p,4)}, v{vT2} offset:{p*8192+u*1024}")
    t("s_waitcnt lgkmcnt(0)")
    for u in range(2):
        b = vR + 16 * u
        for r in range(4): t(f"v_add_f32 v{b+r}, v{b+r}, v{b+4+r}")
        for r in range(4): t(f"v_add_f32 v{b+8+r}, v{b+8+r}, v{b+12+r}")
        for r in range(4): t(f"v_add_f32 v{b+r}, v{b+r}, v{b+8+r}")
    t(f"""
    v_cvt_pk_bf16_f32 v{vP}, v{vR}, v{vR+1}
    v_cvt_pk_bf16_f32 v{vP+1}, v{vR+2}, v{vR+3}
    v_cvt_pk_bf16_f32 v{vP+2}, v{vR+16}, v{vR+17}
    v_cvt_pk_bf16_f32 v{vP+3}, v{vR+18}, v{vR+19}
    s_nop 1
    v_permlane32_swap_b32 v{vP}, v{vP+2}
    v_permlane32_swap_b32 v{vP+1}, v{vP+3}
    buffer_store_dwordx4 {vr(vP,4)}, v{vPo}, {OUT}, s{sT} offen{" sc1" if "osc" in exp else (" nt" if "ont" in exp else "")}
    """)
    if SP.on:
        t("s_waitcnt vmcnt(0)")
        SP.st(t, 9)
        t("s_memrealtime s[60:61]")
        t("s_waitcnt lgkmcnt(0)")
        t("s_mov_b32 s94, s101")
        t("s_mov_b32 s96, s60")
        SP.flush(t, WS, sWave, 12, sT)
    t.label("L_end")
    t("s_endpgm")
    b = Asm()
    b.label("L_slow")
    Sx = vS[0]
    b(f"s_mov_b32 s{sT}, 0xff800000")
    b(f"v_mov_b32 v{vM}, s{sT}")
    b(f"v_mov_b32 v{vKA}, v{vL16}")
    b(f"v_add_u32 v{vVA}, {65536 - VL}, v{vVA}")
    for j in range(16): b(f"v_mov_b32 v{vO+j}, 0")
    b("s_mov_b32 s22, 0")
    b.label("L_slowloop")
    b(f"""
    buffer_load_dwordx4 {vr(vK[0],4)}, v{vKA}, {WS}, s{sKV} offen sc1
    s_mov_b64 exec, s[{sVM}:{sVM+1}]
    buffer_load_dwordx4 {vr(vV[0][0],4)}, v{vVA}, {WS}, s{sKV} offen sc1
    buffer_load_dwordx4 {vr(vV[0][1],4)}, v{vVA}, {WS}, s{sKV} offen offset:512 sc1
    s_mov_b64 exec, -1
    s_waitcnt vmcnt(0)
    v_mfma_f32_32x32x16_bf16 {vr(Sx,16)}, {vr(vK[0],4)}, {vr(vQ,4)}, 0
    v_add_u32 v{vKA}, 1024, v{vKA}
    v_add_u32 v{vVA}, 1024, v{vVA}
    s_nop 9
    v_max3_f32 v{vT}, v{Sx}, v{Sx+1}, v{Sx+2}
    v_max3_f32 v{vT}, v{vT}, v{Sx+3}, v{Sx+4}
    v_max3_f32 v{vT}, v{vT}, v{Sx+5}, v{Sx+6}
    v_max3_f32 v{vT}, v{vT}, v{Sx+7}, v{Sx+8}
    v_max3_f32 v{vT}, v{vT}, v{Sx+9}, v{Sx+10}
    v_max3_f32 v{vT}, v{vT}, v{Sx+11}, v{Sx+12}
    v_max3_f32 v{vT}, v{vT}, v{Sx+13}, v{Sx+14}
    v_max_f32 v{vT}, v{vT}, v{Sx+15}
    v_mov_b32 v{vT2}, v{vT}
    s_nop 1
    v_permlane32_swap_b32 v{vT}, v{vT2}
    s_nop 1
    v_max3_f32 v{vT}, v{vT}, v{vT2}, v{vM}
    v_sub_f32 v{vT2}, v{vM}, v{vT}
    v_exp_f32 v{vT2}, v{vT2}
    v_mov_b32 v{vM}, v{vT}
    """)
    for j in range(16): b(f"v_mul_f32 v{vO+j}, v{vO+j}, v{vT2}")
    for j in range(16): b(f"v_sub_f32 v{Sx+j}, v{Sx+j}, v{vM}")
    for j in range(16): b(f"v_exp_f32 v{Sx+j}, v{Sx+j}")
    b("s_nop 0")
    for j in range(8): b(f"v_cvt_pk_bf16_f32 v{vP+j}, v{Sx+2*j}, v{Sx+2*j+1}")
    b(f"""
    s_nop 1
    v_mfma_f32_32x32x16_bf16 {vr(vO,16)}, {vr(vV[0][0],4)}, {vr(vP,4)}, {vr(vO,16)}
    v_mfma_f32_32x32x16_bf16 {vr(vO,16)}, {vr(vV[0][1],4)}, {vr(vP+4,4)}, {vr(vO,16)}
    s_add_u32 s22, s22, 1
    s_cmp_lt_u32 s22, 64
    s_nop 11
    s_cbranch_scc1 L_slowloop
    s_branch L_fin
    """)
    check(a.lines + c.lines + ce.lines + tC.lines + t.lines, "even")
    check(a.lines + c.lines + co.lines + tC.lines, "odd")
    check(a.lines + l.lines + le.lines + tL.lines + t.lines, "loader")
    check(a.lines + l.lines + lo.lines + tL.lines, "loader_odd")
    check(b.lines + b.lines + t.lines[t.lines.index("L_fin:"):], "slow")
    nb = lambda L: sum(1 for x in L if "s_barrier" in x)
    print("barriers", nb(c.lines + ce.lines + tC.lines), nb(l.lines + le.lines + tL.lines), nb(c.lines + co.lines + tC.lines), nb(l.lines + lo.lines + tL.lines), nb(t.lines), "ncom", ncom, "fs", "".join(map(str, fs)))
    return khead(name) + "".join(x.text() for x in (a, l, le, lo, c, ce, co, tC, tL, t, b, ool)) + kd(name, 256, 102)

if __name__ == "__main__":
    import sys
    NAME = "gated_mix__softmax_full_mha__dense_activation_silu__prompt"
    ref = open(f"cdna_kernels/{NAME}.s.ref").read().split("\n")
    hdr = [x for x in ref if x.startswith(";") and "@launch" not in x and "Override launch" not in x and "grid=ceil" not in x]
    dst = sys.argv[1] if len(sys.argv) > 1 else f"cdna_kernels/{NAME}.s"
    ST = int(sys.argv[2]) if len(sys.argv) > 2 else 0
    aslist = ST > 0 or (len(sys.argv) > 4)
    out = "\n".join(hdr) + "\n"
    if aslist: out += f"; @launch kernel={NAME}_kernel grid=(256,1,1) block=(512,1,1) lds=163840\n"
    else: out += "; @launch grid=(256,1,1) block=(512,1,1) lds=163840\n"
    out += '.amdgcn_target "amdgcn-amd-amdhsa--gfx950"\n'
    out += gen(NAME + "_kernel", stamps=ST, exp=(sys.argv[3] if len(sys.argv) > 3 else ""))
    open(dst, "w").write(out)
    print("wrote", dst, len(out))
```

```python
from asmlib import *
from k1 import f32, QSCALE
from k1b import spread
import re

WS_Q = 0; WS_KV = 2 << 20; WS_O = 6 << 20; WS_H = 8 << 20; WS_W = 16 << 20; WS_G = 20 << 20
WS_F = 24 << 20
FQ = WS_F
FH = WS_F + 0x20000
FW = WS_F + 0x40000
FG = WS_F + 0x50000
WS_SIZE = 32 << 20
SC = " sc1"
SPIN_MAX = 20000

def gen(name, stamps=0, exp=""):
    def P(key, dflt):
        m = re.search(key + r"(\d+)", exp)
        return int(m.group(1)) if m else dflt
    sWave = 12; sRb = 13; sCg = 14; sT = 15; sT2 = 16; sT3 = 17; sTT = 18; sFA = 19; sFB = 50; sOdd = 51; sG = 59; sT4 = 95
    sTok = 72; sGr = 10; sDone = 11
    DBG = "s[64:67]"; OUT = "s[68:71]"; WS = "s[32:35]"
    vL = 2
    uid = [0]
    SP = Stamper(stamps >= 2, base=74, slot=0)
    if stamps == 3: SP.ins = "s_memrealtime"
    FS = "fs" in exp
    RBAL = "bal" in exp
    sTy = 3 if RBAL else sOdd
    PS = "ps" in exp and SP.on
    F2 = "fs2" in exp and SP.on
    KB1 = "kb" in exp
    HY = "hy" in exp
    HX = "hx" in exp
    TSL = [int(x) for x in re.search(r"ts([\d.]+)", exp).group(1).split(".")] if re.search(r"ts\d", exp) else None
    a = Asm()
    ool = Asm()
    a("""
    s_cmp_ge_u32 s2, 256
    s_cbranch_scc1 L_end
    """)
    SP.st(a, 0)
    if SP.on: a("s_memrealtime s[60:61]\ns_waitcnt lgkmcnt(0)\ns_mov_b32 s101, s60")
    a(f"""
    s_load_dwordx4 s[4:7], s[0:1], 0
    s_load_dwordx2 s[8:9], s[0:1], 16
    s_load_dwordx4 s[44:47], s[0:1], 32
    s_load_dwordx4 s[52:55], s[0:1], 48
    s_load_dwordx4 s[60:63], s[0:1], 64
    v_lshrrev_b32 v1, 6, v0
    v_and_b32 v{vL}, 63, v0
    v_readfirstlane_b32 s{sWave}, v1
    s_and_b32 s{sT}, s2, 7
    s_lshr_b32 s{sT2}, s2, 3
    s_and_b32 s{sRb}, s{sT}, 1
    s_lshl_b32 s{sRb}, s{sRb}, 3
    s_and_b32 s{sT3}, s{sT2}, 7
    s_add_u32 s{sRb}, s{sRb}, s{sT3}
    s_lshr_b32 s{sCg}, s{sT}, 1
    s_lshl_b32 s{sCg}, s{sCg}, 2
    s_lshr_b32 s{sT3}, s{sT2}, 3
    s_add_u32 s{sCg}, s{sCg}, s{sT3}
    s_and_b32 s{sOdd}, s{sCg}, 1
    s_lshr_b32 s{sG}, s{sCg}, 1
    """)
    if not RBAL: a(f"""
    s_lshr_b32 s{sT}, s{sCg}, 2
    s_mul_i32 s{sT}, s{sT}, 14
    s_and_b32 s{sT2}, s{sCg}, 3
    s_lshl_b32 s{sT2}, s{sT2}, 3
    s_lshr_b32 s{sFA}, 0x0c080400, s{sT2}
    s_and_b32 s{sFA}, s{sFA}, 0xff
    s_add_u32 s{sFA}, s{sFA}, s{sT}
    s_lshr_b32 s{sFB}, 0x070a0602, s{sT2}
    s_and_b32 s{sFB}, s{sFB}, 0xff
    s_add_u32 s{sFB}, s{sFB}, s{sT}
    s_lshl_b32 s100, s{sRb}, 3
    s_add_u32 s100, s100, s{sG}
    """)
    else: a(f"""
    s_lshr_b32 s{sTy}, s{sCg}, 3
    s_lshl_b32 s{sFA}, s{sCg}, 2
    s_add_u32 s{sFB}, s{sFA}, 2
    s_bfe_u32 s{sT}, s{sCg}, 0x10002
    s_mul_i32 s{sT}, s{sT}, 12
    s_add_u32 s{sT}, s{sT}, 32
    s_and_b32 s{sT2}, s{sCg}, 3
    s_add_u32 s{sT3}, s{sT}, s{sT2}
    s_add_u32 s{sT}, s{sT3}, s{sT2}
    s_add_u32 s{sT3}, s{sT3}, 8
    s_cmp_lg_u32 s{sTy}, 0
    s_cselect_b32 s{sFA}, s{sT}, s{sFA}
    s_cselect_b32 s{sFB}, s{sT3}, s{sFB}
    s_lshl_b32 s100, s{sRb}, 3
    s_and_b32 s{sT}, s{sCg}, 7
    s_add_u32 s100, s100, s{sT}
    """)
    a(f"""
    s_mov_b32 s22, {2048*1024}
    s_mov_b32 s23, 0x00020000
    s_mov_b32 s26, {512*3072}
    s_mov_b32 s27, 0x00020000
    s_mov_b32 s30, {512*3584}
    s_mov_b32 s31, 0x00020000
    s_mov_b32 s34, {WS_SIZE}
    s_mov_b32 s35, 0x00020000
    s_mov_b32 s39, 0x00020000
    s_mov_b32 s42, 1024
    s_mov_b32 s43, 0x00020000
    s_mov_b32 s66, 256
    s_mov_b32 s67, 0x00020000
    s_mov_b32 s70, {2048*1024}
    s_mov_b32 s71, 0x00020000
    s_cmp_lt_u32 s{sWave}, 4
    s_cbranch_scc1 L_comp
    """)
    sBand = 100
    srdsetup = """
    s_waitcnt lgkmcnt(0)
    s_mov_b32 s20, s4
    s_mov_b32 s21, s5
    s_mov_b32 s24, s6
    s_mov_b32 s25, s7
    s_mov_b32 s28, s44
    s_mov_b32 s29, s45
    s_mov_b32 s32, s62
    s_mov_b32 s33, s63
    s_mov_b32 s40, s52
    s_mov_b32 s41, s53
    s_mov_b32 s64, s60
    s_mov_b32 s65, s61
    s_mov_b32 s68, s54
    s_mov_b32 s69, s55
    """
    def get_token(L, vt):
        uid[0] += 1; u = uid[0]
        L(f"v_mov_b32 v{vt+2}, 0")
        L(f"s_mov_b32 s{sT4}, 0")
        L.label(f"L_tok{u}")
        L(f"""
        buffer_load_dwordx2 v[{vt}:{vt+1}], v{vt+2}, {DBG}, 0 offen sc1
        s_add_u32 s{sT4}, s{sT4}, 1
        s_waitcnt vmcnt(0)
        v_readfirstlane_b32 s{sTok}, v{vt}
        v_readfirstlane_b32 s{sTok+1}, v{vt+1}
        s_cmp_gt_u32 s{sT4}, {SPIN_MAX}
        s_cbranch_scc1 L_tokd{u}
        s_cmp_eq_u32 s{sTok}, 0
        s_cbranch_scc1 L_tok{u}
        """)
        L.label(f"L_tokd{u}")
    def token_issue(L, vt):
        L(f"v_mov_b32 v{vt+2}, 0")
        L(f"buffer_load_dwordx2 v[{vt}:{vt+1}], v{vt+2}, {DBG}, 0 offen sc1")
    def token_finish(L, vt, wait):
        uid[0] += 1; lab = f"L_tokok{uid[0]}"
        L(wait)
        L(f"v_readfirstlane_b32 s{sTok}, v{vt}")
        L(f"v_readfirstlane_b32 s{sTok+1}, v{vt+1}")
        L(f"s_cmp_lg_u32 s{sTok}, 0")
        L(f"s_cbranch_scc1 {lab}")
        get_token(L, vt)
        L.label(lab)
    def flag_store(vtok, voff0, soff):
        return ["s_mov_b64 exec, 1",
                f"buffer_store_dwordx2 v[{vtok}:{vtok+1}], v{voff0}, {WS}, s{soff} offen sc1",
                "s_mov_b64 exec, -1"]
    def flag_check(vtok, soff, block=False, stamp=None, cnt=0):
        uid[0] += 1; u = uid[0]
        if block: L = [f"s_cmp_eq_u32 s{sDone}, 0"]
        else:
            L = [f"s_getreg_b32 s{sGr}, hwreg(HW_REG_IB_STS)", f"s_and_b32 s{sGr}, s{sGr}, 0x00c0000f",
                 f"s_or_b32 s{sGr}, s{sGr}, s{sDone}", f"s_cmp_eq_u32 s{sGr}, 0"]
        L += [f"s_cbranch_scc1 L_fc{u}", f"L_fcr{u}:"]
        ool.label(f"L_fc{u}")
        ool(f"s_waitcnt vmcnt({cnt})")
        for x in flag_store(vtok, vtok + 2, soff): ool(x)
        ool(f"s_mov_b32 s{sDone}, 1")
        if stamp is not None and SP.on:
            ool(SP.line(stamp)); ool("s_waitcnt lgkmcnt(0)")
        ool(f"s_branch L_fcr{u}")
        return L
    def emit(L, x):
        if x is None: return
        if x.endswith(":"): L.label(x[:-1])
        else: L(x)
    def poll(L, regs, voffs, soff, mask=None, sleep=1):
        uid[0] += 1; u = uid[0]
        L(f"s_mov_b32 s{sT4}, 0")
        if mask: L(f"s_mov_b64 exec, {mask}")
        L.label(f"L_poll{u}")
        for vd, vo in zip(regs, voffs):
            L(f"buffer_load_dwordx2 v[{vd}:{vd+1}], v{vo}, {WS}, s{soff} offen sc1")
        L(f"s_add_u32 s{sT4}, s{sT4}, 1")
        L("s_waitcnt vmcnt(0)")
        L(f"v_cmp_ne_u64 vcc, s[{sTok}:{sTok+1}], v[{regs[0]}:{regs[0]+1}]")
        if len(regs) > 1:
            L(f"v_cmp_ne_u64 s[4:5], s[{sTok}:{sTok+1}], v[{regs[1]}:{regs[1]+1}]")
            L("s_nop 1")
            L("s_or_b64 vcc, vcc, s[4:5]")
        else: L("s_nop 1")
        L(f"s_cmp_gt_u32 s{sT4}, {SPIN_MAX}")
        L(f"s_cbranch_scc1 L_polld{u}")
        L(f"s_cbranch_vccz L_polld{u}")
        if sleep: L(f"s_sleep {sleep}")
        L(f"s_branch L_poll{u}")
        L.label(f"L_polld{u}")
        if mask: L("s_mov_b64 exec, -1")

    NSLOT = 5; SLOTB = 32768
    slot = lambda st: (st % NSLOT) * SLOTB
    XO, AO, BO = 0, 16384, 24576
    NE = 12
    KE, VE, QE = 65536, 65536 + NE * 1024, 65536 + 2 * NE * 1024
    NK, NV = 44, 43
    KM, VM = 98304, 131072
    KL, VL = 0, 20480
    GW = 65536 + 28672
    GO = 163840 - 64
    sHead = 56; sQb = 57; sKV = 58; sNb = 48
    sSA = 53; sSB = 54; sFl = 52; sFl2 = 49
    vHA = 108; vHB = 128
    attdec = f"""
    s_and_b32 s{sHead}, s2, 7
    s_lshl_b32 s{sHead}, s{sHead}, 2
    s_lshr_b32 s{sT}, s2, 3
    s_and_b32 s{sT2}, s{sT}, 3
    s_add_u32 s{sHead}, s{sHead}, s{sT2}
    s_lshr_b32 s{sNb}, s{sT}, 2
    s_lshl_b32 s{sQb}, s{sNb}, 3
    s_add_u32 s{sQb}, s{sQb}, s{sWave}
    s_lshl_b32 s{sKV}, s{sHead}, 17
    s_add_u32 s{sKV}, s{sKV}, {WS_KV}
    """
    l = Asm()
    sJ = 52; sM = 53; sSo = 54; sXb = 55; sAb = 56; sBb = 57; sFb = 58
    sJ4k, sJ2k, sJ1k, sJ8k = 96, 97, 98, 99
    sXc, sAc, sBc, sRot = 60, 61, 62, 63
    sWA, sWB = 60, 61
    vXe = 4; vXo = 5; vQk = 6; vVs = 7; vFp = 8; vFs = 9; vR = 10
    vGW = 55; vGA = 56; vGx = 60; vGw = 76; vGa = 92; vGt = 20
    l(f"""
    v_lshrrev_b32 v{vR}, 3, v{vL}
    v_and_b32 v{vR+1}, 7, v{vL}
    v_lshrrev_b32 v{vR+2}, 4, v{vL}
    v_xor_b32 v{vR+3}, v{vR+1}, v{vR+2}
    v_lshlrev_b32 v{vR+3}, 4, v{vR+3}
    v_lshl_add_u32 v{vXe}, v{vR}, 10, v{vR+3}
    v_xor_b32 v{vXo}, 64, v{vXe}
    v_and_b32 v{vR+2}, 1, v{vR+2}
    v_lshlrev_b32 v{vR+2}, 2, v{vR+2}
    v_xor_b32 v{vR+3}, v{vR+1}, v{vR+2}
    v_lshlrev_b32 v{vR+3}, 4, v{vR+3}
    v_mul_u32_u24 v{vQk}, 3072, v{vR}
    v_add_u32 v{vQk}, v{vQk}, v{vR+3}
    v_mul_u32_u24 v{vFp}, 3584, v{vR}
    v_add_u32 v{vFp}, v{vFp}, v{vR+3}
    v_lshrrev_b32 v{vR}, 2, v{vL}
    v_and_b32 v{vR+1}, 3, v{vL}
    v_lshlrev_b32 v{vR+1}, 4, v{vR+1}
    v_mul_u32_u24 v{vVs}, 3072, v{vR}
    v_add_u32 v{vVs}, v{vVs}, v{vR+1}
    v_mul_u32_u24 v{vFs}, 3584, v{vR}
    v_add_u32 v{vFs}, v{vFs}, v{vR+1}
    v_lshlrev_b32 v{vR}, 4, v{vL}
    s_sub_u32 s{sBb}, s{sWave}, 4
    s_lshl_b32 s{sJ4k}, s{sBb}, 12
    s_lshl_b32 s{sJ2k}, s{sBb}, 11
    s_lshl_b32 s{sJ1k}, s{sBb}, 10
    s_lshl_b32 s{sJ8k}, s{sBb}, 13
    s_lshl_b32 s{sFb}, s{sRb}, 17
    s_lshl_b32 s{sT}, s{sBb}, 15
    s_add_u32 s{sFb}, s{sFb}, s{sT}
    s_lshl_b32 s{sAb}, s{sG}, 7
    s_mul_i32 s{sT}, s{sBb}, {16*3072}
    s_add_u32 s{sAb}, s{sAb}, s{sT}
    s_lshl_b32 s{sT2}, s{sOdd}, 10
    s_add_u32 s{sAb}, s{sAb}, s{sT2}
    s_lshl_b32 s{sBb}, s{sCg}, 6
    s_add_u32 s{sBb}, s{sBb}, 2048
    s_add_u32 s{sBb}, s{sBb}, s{sT}
    s_lshr_b32 s{sT3}, s{sCg}, 2
    s_lshl_b32 s{sT3}, s{sT3}, 1
    s_add_u32 s{sT3}, s{sT3}, s{sRb}
    """)
    l(srdsetup)
    l(f"""
    s_sub_u32 s{sJ}, s{sWave}, 4
    s_mov_b32 s{sXb}, s{sFb}
    s_and_b32 s{sRot}, s{sT3}, {0 if "norot" in exp else 7}
    """)
    def dma(L, vo, srd, m0base, m0j, src_sreg, src_add, sc=""):
        L(f"s_add_u32 s{sM}, s{m0j}, {m0base}")
        L(f"s_mov_b32 m0, s{sM}")
        L(f"s_add_u32 s{sSo}, s{src_sreg}, {src_add}")
        L(f"buffer_load_dwordx4 v{vo}, {srd}, s{sSo} offen{sc} lds")
    def stage_dma(L, st, odd):
        n = 0
        if st < 8:
            L(f"""
            s_add_u32 s{sT}, s{sRot}, {st}
            s_and_b32 s{sT}, s{sT}, 7
            s_lshl_b32 s{sXc}, s{sT}, 7
            s_add_u32 s{sXc}, s{sXc}, s{sXb}
            s_mul_i32 s{sT}, s{sT}, {64*3072}
            s_add_u32 s{sAc}, s{sAb}, s{sT}
            s_add_u32 s{sBc}, s{sBb}, s{sT}
            """)
            for i in range(4):
                dma(L, vXe if i % 2 == 0 else vXo, "s[20:23]", slot(st) + XO + i * 1024, sJ4k, sXc, i * 8192); n += 1
            for i in range(2):
                dma(L, vQk, "s[24:27]", slot(st) + AO + i * 1024, sJ2k, sAc, (i * 8) * 3072); n += 1
            dma(L, vVs, "s[24:27]", slot(st) + BO, sJ1k, sBc, 0); n += 1
        elif st < 10 or not odd:
            sF = sFA if st < 10 else sFB
            L(f"s_lshl_b32 s{sFb}, s{sF}, 6")
            L(f"s_add_u32 s{sT}, s{sJ}, s{sRot}")
            L(f"s_add_u32 s{sT}, s{sT}, {(st % 2) * 4}")
            L(f"s_and_b32 s{sT}, s{sT}, 7")
            L(f"s_mul_i32 s{sT}, s{sT}, {64*3584}")
            L(f"s_add_u32 s{sFb}, s{sFb}, s{sT}")
            for i in range(8):
                dma(L, vFp, "s[28:31]", slot(st) + i * 1024, sJ8k, sFb, (i * 8) * 3584); n += 1
        else:
            for hb in range(2):
                L(f"s_lshl_b32 s{sFb}, s{sFB}, 6")
                L(f"s_lshl_b32 s{sT}, s{sJ}, 1")
                L(f"s_add_u32 s{sT}, s{sT}, s{sRot}")
                L(f"s_add_u32 s{sT}, s{sT}, {hb}")
                L(f"s_and_b32 s{sT}, s{sT}, 7")
                L(f"s_mul_i32 s{sT}, s{sT}, {64*3584}")
                L(f"s_add_u32 s{sFb}, s{sFb}, s{sT}")
                for i in range(4):
                    dma(L, vFs, "s[28:31]", slot(st) + (hb * 4 + i) * 1024, sJ8k, sFb, i * 16 * 3584); n += 1
        return n
    RB = slot(11)
    vRo = 16; vRa = 17; vD = 24; vTk = 52
    bandsrd = f"""
    s_cmp_lt_u32 s{sBand}, 32
    s_cselect_b32 s36, s8, s46
    s_cselect_b32 s37, s9, s47
    s_mov_b32 s38, {1792*1024}
    s_cselect_b32 s38, {512*1024}, s38
    s_cselect_b32 s{sT}, 0, 32
    s_sub_u32 s{sT}, s{sBand}, s{sT}
    s_mov_b32 s4, s46
    s_mov_b32 s5, s47
    s_mov_b32 s6, {1792*1024}
    s_mov_b32 s7, 0x00020000
    """
    def relayout_issue(lo, vqo):
        lo(f"""
        v_lshrrev_b32 v{vGt}, 4, v{vL}
        v_lshlrev_b32 v{vGt}, 10, v{vGt}
        v_and_b32 v{vGt+1}, 15, v{vL}
        v_lshl_add_u32 v{vRo}, v{vGt+1}, 4, v{vGt}
        v_lshrrev_b32 v{vGt}, 5, v{vL}
        v_lshlrev_b32 v{vGt}, 10, v{vGt}
        v_bfe_u32 v{vGt+1}, v{vL}, 2, 2
        v_lshl_add_u32 v{vGt}, v{vGt+1}, 8, v{vGt}
        v_bfe_u32 v{vGt+1}, v{vL}, 4, 1
        v_lshl_add_u32 v{vGt}, v{vGt+1}, 5, v{vGt}
        v_and_b32 v{vGt+1}, 3, v{vL}
        v_lshl_add_u32 v{vRa}, v{vGt+1}, 3, v{vGt}
        s_add_u32 s{sT}, s{sJ4k}, {RB}
        v_add_u32 v{vRa}, s{sT}, v{vRa}
        """)
        lo(bandsrd)
        lo(f"""
        s_lshl_b32 s{sFb}, s{sT}, 14
        s_lshl_b32 s{sT}, s{sJ}, 8
        s_add_u32 s{sFb}, s{sFb}, s{sT}
        """)
        for i in range(4):
            dma(lo, vRo, "s[36:39]", RB + i * 1024, sJ4k, sFb, i * 4096); vqo.issue("band")
        lo(f"""
        s_add_u32 s{sT}, s{sBand}, 96
        s_lshl_b32 s{sFb}, s{sT}, 14
        s_lshl_b32 s{sT}, s{sJ}, 8
        s_add_u32 s{sFb}, s{sFb}, s{sT}
        """)
        for i in range(4):
            dma(lo, vRo, "s[4:7]", RB + 16384 + i * 1024, sJ4k, sFb, i * 4096); vqo.issue("band")
    vqc = Q("vmcnt", 63)
    INIT = P("ini", 2)
    for _ in range(stage_dma(l, 0, False)): vqc.issue(0)
    l(f"""
    s_lshl_b32 s{sT}, s{sJ}, 8
    s_add_u32 s{sM}, s{sT}, {GW}
    s_mov_b32 m0, s{sM}
    s_mov_b64 exec, 0xffff
    buffer_load_dwordx4 v{vR}, s[40:43], s{sT} offen lds
    s_mov_b64 exec, -1
    """)
    vqc.issue(0)
    for st in range(1, INIT):
        for _ in range(stage_dma(l, st, False)): vqc.issue(st)
    l(f"""
    s_cmp_lg_u32 s2, 0
    s_cbranch_scc1 L_notok
    s_cmp_lg_u32 s{sWave}, 4
    s_cbranch_scc1 L_notok
    s_memrealtime s[{sTok}:{sTok+1}]
    v_mov_b32 v{vTk+2}, 0
    s_waitcnt lgkmcnt(0)
    s_or_b32 s{sTok}, s{sTok}, 1
    v_mov_b32 v{vTk}, s{sTok}
    v_mov_b32 v{vTk+1}, s{sTok+1}
    s_mov_b64 exec, 1
    buffer_store_dwordx2 v[{vTk}:{vTk+1}], v{vTk+2}, {DBG}, 0 offen sc1
    s_mov_b64 exec, -1
    s_waitcnt vmcnt(0)
    """)
    l.label("L_notok")
    l(f"""
    v_and_b32 v{vGt}, 31, v{vL}
    v_lshlrev_b32 v{vGt}, 7, v{vGt}
    v_add_u32 v{vGt}, s{sJ4k}, v{vGt}
    v_lshrrev_b32 v{vGt+1}, 5, v{vL}
    v_bfe_u32 v{vGt+2}, v{vL}, 1, 3
    v_lshlrev_b32 v{vGW}, 4, v{vGt+1}
    v_add_u32 v{vGW}, {GW}, v{vGW}
    """)
    for s in range(4):
        l(f"v_or_b32 v{vGt+3}, {2*s}, v{vGt+1}")
        l(f"v_xor_b32 v{vGt+3}, v{vGt+3}, v{vGt+2}")
        l(f"v_lshl_add_u32 v{vGA+s}, v{vGt+3}, 4, v{vGt}")
    def gate_block(L, st):
        uid[0] += 1; u = uid[0]
        L(f"s_cmp_lg_u32 s{sCg}, 1")
        L(f"s_cbranch_scc1 L_ng{u}")
        L(f"s_add_u32 s{sT}, s{sRot}, {st}")
        L(f"s_and_b32 s{sT}, s{sT}, 7")
        L(f"s_lshl_b32 s{sT}, s{sT}, 7")
        L(f"v_add_u32 v{vGt}, s{sT}, v{vGW}")
        for s in range(4):
            L(f"v_add_u32 v{vGt+1}, {slot(st)+XO}, v{vGA+s}")
            L(f"ds_read_b128 {vr(vGx+4*s,4)}, v{vGt+1}")
            L(f"ds_read_b128 {vr(vGw+4*s,4)}, v{vGt} offset:{s*32}")
        for s in range(4):
            L(f"s_waitcnt lgkmcnt({6-2*s})")
            cc = "0" if (st == 0 and s == 0) else vr(vGa, 16)
            L(f"v_mfma_f32_32x32x16_bf16 {vr(vGa,16)}, {vr(vGw+4*s,4)}, {vr(vGx+4*s,4)}, {cc}")
        if st == 7:
            L(f"""
            s_mov_b32 s{sT3}, {f32(-1.4426950408889634)}
            s_lshl_b32 s{sT}, s{sRb}, 2
            s_add_u32 s{sT}, s{sT}, s{sJ}
            s_lshl_b32 s{sT}, s{sT}, 7
            s_add_u32 s{sT}, s{sT}, {WS_G}
            v_lshlrev_b32 v{vGt+1}, 2, v{vL}
            s_nop 7
            v_mul_f32 v{vGt}, s{sT3}, v{vGa}
            v_exp_f32 v{vGt}, v{vGt}
            s_nop 0
            v_add_f32 v{vGt}, 1.0, v{vGt}
            v_rcp_f32 v{vGt}, v{vGt}
            s_mov_b64 exec, 0xffffffff
            buffer_store_dword v{vGt}, v{vGt+1}, {WS}, s{sT} offen{SC}
            s_mov_b64 exec, -1
            """)
        L.label(f"L_ng{u}")
    def loader_seq(L, odd, vq, first, last):
        nst = 11 if odd else 12
        for st in range(first, last + 1):
            L(vq.need({st}))
            if FS and not F2 and st in (0, 2, 4, 7): SP.st(L, {0: 4, 2: 5, 4: 6, 7: 7}[st])
            if F2 and st in (7, 8, 9): SP.st(L, {7: 7, 8: 4, 9: 5}[st])
            L("s_barrier")
            for nx in ((2, 3) if st == 0 else (st + 3,)):
                if INIT <= nx < nst:
                    for _ in range(stage_dma(L, nx, odd)): vq.issue(nx)
            if st == 5:
                token_issue(L, vTk); vq.issue("tok")
            if odd and st == 8: relayout_issue(L, vq)
            if st < 8 and (odd != RBAL or st < 7):
                if FS and SP.on: L("s_waitcnt lgkmcnt(0)")
                gate_block(L, st)
    loader_seq(l, False, vqc, 0, 6)
    l(f"s_cmp_lg_u32 s{sTy}, 0")
    l("s_cbranch_scc1 L_lodd")
    def wst(L, va):
        for b, (sreg, base) in enumerate(((sWA, vHA), (sWB, vHB))):
            if b == 1:
                L(f"s_cmp_ge_u32 s{sBand}, 16")
                L("s_cbranch_scc1 L_now")
            for n in range(4):
                L(f"buffer_store_dwordx4 {vr(base+4*n,4)}, v{va}, {WS}, s{sreg} offen{SC}")
                if n < 3: L(f"s_add_u32 s{sreg}, s{sreg}, {144*1024}")
        L.label("L_now")
    def loader_tail(L, odd):
        vq = vqc.copy()
        loader_seq(L, odd, vq, 7, 9)
        L(vq.drain())
        if F2: SP.st(L, 6); L("s_waitcnt lgkmcnt(0)")
        if odd:
            for b in range(2):
                base = (vHA, vHB)[b]
                for n in range(4):
                    L(f"ds_read_b64_tr_b16 {vr(base+4*n,2)}, v{vRa} offset:{b*16384+n*64}")
                    L(f"ds_read_b64_tr_b16 {vr(base+4*n+2,2)}, v{vRa} offset:{b*16384+n*64+2048}")
                L("s_waitcnt lgkmcnt(0)")
        L("s_barrier")
        SP.st(L, 1)
        token_finish(L, vTk, None)
        L(attdec)
        L(f"v_mov_b32 v{vGt+2}, {GO}")
        L("s_barrier")
        if odd != RBAL:
            L(f"s_cmp_lg_u32 s{sCg}, 1")
            L("s_cbranch_scc1 L_nofg")
            L(f"""
            s_lshl_b32 s{sT}, s{sRb}, 2
            s_add_u32 s{sT}, s{sT}, s{sJ}
            s_lshl_b32 s{sT}, s{sT}, 7
            s_add_u32 s{sT}, s{sT}, {FG}
            """)
            for x in flag_store(vTk, vTk + 2, sT): L(x)
            L.label("L_nofg")
        if odd:
            L(f"""
            s_mul_i32 s{sT}, s{sJ}, {4*144*1024}
            s_lshl_b32 s{sT2}, s{sBand}, 10
            s_add_u32 s{sT}, s{sT}, s{sT2}
            s_add_u32 s{sWA}, s{sT}, {WS_W}
            s_add_u32 s{sWB}, s{sWA}, {128*1024}
            s_lshl_b32 s{sT}, s{sJ}, 14
            s_lshl_b32 s{sT2}, s{sBand}, 7
            s_add_u32 s{sFl2}, s{sT}, s{sT2}
            s_add_u32 s{sFl2}, s{sFl2}, {FW}
            """)
            if HX: wst(L, vR)
        L(f"s_mov_b32 s{sDone}, {0 if odd and not HX else 1}")
        if False:
            def wst():
                for b, (sreg, base) in enumerate(((sSA, vHA), (sSB, vHB))):
                    if b == 1:
                        L(f"s_cmp_ge_u32 s{sBand}, 16")
                        L("s_cbranch_scc1 L_now")
                    for n in range(4):
                        L(f"buffer_store_dwordx4 {vr(base+4*n,4)}, v{vR}, {WS}, s{sreg} offen{SC}")
                        if n < 3: L(f"s_add_u32 s{sreg}, s{sreg}, {144*1024}")
                L.label("L_now")
            wst()
        uid[0] += 1; u = uid[0]
        L(f"s_cmp_lg_u32 s{sJ}, 0")
        L(f"s_cbranch_scc1 L_np{u}")
        L(f"""
        s_lshr_b32 s{sT}, s{sHead}, 2
        s_lshl_b32 s{sT}, s{sT}, 14
        s_add_u32 s{sT3}, s{sT}, {FQ}
        v_lshlrev_b32 v{vGt}, 7, v{vL}
        v_add_u32 v{vGt+1}, 8192, v{vGt}
        """)
        poll(L, [vD, vD + 2], [vGt, vGt + 1], sT3)
        if "gl" not in exp: L(f"ds_write_b64 v{vGt+2}, v[{vTk}:{vTk+1}]")
        SP.st(L, 2)
        L(f"""
        s_lshl_b32 s{sSo}, s{sHead}, 16
        s_lshl_b32 s{sT}, s{sNb}, 13
        s_add_u32 s{sSo}, s{sSo}, s{sT}
        """)
        def grp(ldsb, sadd):
            L(f"s_mov_b32 m0, {ldsb}")
            L(sadd)
            for j in range(4):
                L(f"buffer_load_dwordx4 v{vR}, {WS}, s{sSo} offen offset:{j*1024} sc1 lds")
        grp(QE, "s_nop 0")
        grp(QE + 4096, f"s_add_u32 s{sSo}, s{sSo}, 4096")
        for q in range(NE // 4):
            grp(KE + q * 4096, f"s_add_u32 s{sSo}, s{sKV}, {q*4096}")
            grp(VE + q * 4096, f"s_add_u32 s{sSo}, s{sKV}, {65536+q*4096}")
        if "gl" in exp: L(f"ds_write_b64 v{vGt+2}, v[{vTk}:{vTk+1}]")
        L("s_waitcnt vmcnt(0)")
        L(f"s_branch L_nq{u}")
        L.label(f"L_np{u}")
        L(f"s_mov_b32 s{sT4}, 0")
        L.label(f"L_go{u}")
        L(f"""
        s_sleep 1
        ds_read_b64 v[{vD}:{vD+1}], v{vGt+2}
        s_add_u32 s{sT4}, s{sT4}, 1
        s_waitcnt lgkmcnt(0)
        v_cmp_ne_u64 vcc, s[{sTok}:{sTok+1}], v[{vD}:{vD+1}]
        s_cmp_gt_u32 s{sT4}, {SPIN_MAX * 16}
        s_cbranch_scc1 L_god{u}
        s_cbranch_vccnz L_go{u}
        """)
        L.label(f"L_god{u}")
        for q in range(6):
            if q == 5:
                L(f"s_cmp_lg_u32 s{sJ}, 1")
                L(f"s_cbranch_scc1 L_nw{u}")
            L(f"""
            s_add_u32 s{sT}, s{sJ}, {3*q - 1 if q else 0xffffffff}
            s_and_b32 s{sT2}, s{sT}, 1
            s_lshr_b32 s{sT}, s{sT}, 1
            s_lshl_b32 s{sT}, s{sT}, 12
            s_lshl_b32 s{sM}, s{sT2}, 15
            s_add_u32 s{sM}, s{sM}, s{sT}
            s_add_u32 s{sM}, s{sM}, {KM}
            s_mov_b32 m0, s{sM}
            s_lshl_b32 s{sSo}, s{sT2}, 16
            s_add_u32 s{sSo}, s{sSo}, s{sT}
            s_add_u32 s{sSo}, s{sSo}, s{sKV}
            s_add_u32 s{sSo}, s{sSo}, {NE*1024}
            """)
            for j in range(4 if q < 5 else 3):
                L(f"buffer_load_dwordx4 v{vR}, {WS}, s{sSo} offen offset:{j*1024} sc1 lds")
        L.label(f"L_nw{u}")
        if not KB1: L("s_waitcnt vmcnt(0)")
        L.label(f"L_nq{u}")
        if odd and HX:
            for x in flag_store(vTk, vTk + 2, sFl2): L(x)
        L("s_branch L_attL")
    le = Asm(); loader_tail(le, False)
    lo = Asm(); lo.label("L_lodd"); loader_tail(lo, True)
    vL16 = 3; vXA = 4; vPA = 8; vSA = 10; vVO = 11; vT = 1
    vE = 12; vPk = 20
    NW = 8
    vW = [28 + 4 * i for i in range(NW)]
    vAcc = [60, 76, 92, 108]
    vCt = 124
    vX = 128
    c = Asm()
    c.label("L_comp")
    c(f"""
    v_lshlrev_b32 v{vL16}, 4, v{vL}
    s_lshl_b32 s{sTT}, s{sRb}, 2
    s_add_u32 s{sTT}, s{sTT}, s{sWave}
    v_and_b32 v{vT}, 31, v{vL}
    v_lshlrev_b32 v{vE}, 7, v{vT}
    s_lshl_b32 s{sT}, s{sWave}, 12
    v_add_u32 v{vE}, s{sT}, v{vE}
    v_lshrrev_b32 v{vE+1}, 5, v{vL}
    v_bfe_u32 v{vE+2}, v{vL}, 1, 3
    """)
    for s in range(4):
        c(f"v_or_b32 v{vE+3}, {2*s}, v{vE+1}")
        c(f"v_xor_b32 v{vE+3}, v{vE+3}, v{vE+2}")
        c(f"v_lshl_add_u32 v{vXA+s}, v{vE+3}, 4, v{vE}")
    c(f"""
    v_bfe_u32 v{vE}, v{vL}, 4, 1
    v_lshlrev_b32 v{vE}, 5, v{vE}
    v_and_b32 v{vE+1}, 3, v{vL}
    v_lshl_add_u32 v{vE}, v{vE+1}, 3, v{vE}
    v_lshrrev_b32 v{vE+1}, 5, v{vL}
    v_lshlrev_b32 v{vE+1}, 3, v{vE+1}
    v_bfe_u32 v{vE+2}, v{vL}, 2, 2
    v_add_u32 v{vE+1}, v{vE+1}, v{vE+2}
    v_lshl_add_u32 v{vSA}, v{vE+1}, 6, v{vE}
    v_lshl_add_u32 v{vPA}, v{vE+1}, 7, v{vE}
    v_bfe_u32 v{vE+2}, v{vL}, 3, 1
    v_lshl_add_u32 v{vPA}, v{vE+2}, 6, v{vPA}
    v_xor_b32 v{vPA+1}, 64, v{vPA}
    v_bfe_u32 v{vE}, v{vL}, 4, 1
    v_lshlrev_b32 v{vE}, 17, v{vE}
    v_lshrrev_b32 v{vE+1}, 5, v{vL}
    v_lshl_add_u32 v{vE}, v{vE+1}, 8, v{vE}
    v_and_b32 v{vE+1}, 15, v{vL}
    v_lshl_add_u32 v{vVO}, v{vE+1}, 4, v{vE}
    v_mov_b32 v{vPk}, -1
    v_mov_b32 v{vPk+1}, -1
    v_mov_b32 v{vPk+2}, -1
    v_mov_b32 v{vPk+3}, -1
    s_lshl_b32 s{sT}, s{sTT}, 15
    s_lshl_b32 s{sT2}, s{sCg}, 11
    s_add_u32 s{sT}, s{sT}, s{sT2}
    s_add_u32 s{sT3}, s{sT}, {WS_O}
    s_mov_b32 s{sDone}, 0
    """)
    c(srdsetup)
    poison = f"""
    buffer_store_dwordx4 {vr(vPk,4)}, v{vL16}, {WS}, s{sT3} offen{SC}
    buffer_store_dwordx4 {vr(vPk,4)}, v{vL16}, {WS}, s{sT3} offen offset:1024{SC}
    """
    c(poison)
    c(f"""
    s_lshl_b32 s{sFl}, s{sG}, 14
    s_lshl_b32 s{sT}, s{sRb}, 10
    s_add_u32 s{sFl}, s{sFl}, s{sT}
    s_lshl_b32 s{sT}, s{sOdd}, 9
    s_add_u32 s{sFl}, s{sFl}, s{sT}
    s_lshl_b32 s{sT}, s{sWave}, 7
    s_add_u32 s{sFl}, s{sFl}, s{sT}
    s_add_u32 s{sFl}, s{sFl}, {FQ}
    s_lshl_b32 s{sFl2}, s{sTT}, 11
    s_lshl_b32 s{sT}, s{sCg}, 7
    s_add_u32 s{sFl2}, s{sFl2}, s{sT}
    s_add_u32 s{sFl2}, s{sFl2}, {FH}
    """)
    c(f"""
    s_lshl_b32 s53, s{sCg}, 18
    s_lshl_b32 s{sT2}, s{sTT}, 10
    s_add_u32 s53, s53, s{sT2}
    s_add_u32 s53, s53, {WS_KV + 65536}
    s_add_u32 s{sT}, s{sOdd}, 18
    s_lshl_b32 s54, s{sG}, s{sT}
    s_add_u32 s54, s54, s{sT2}
    s_mul_i32 s{sT}, s{sOdd}, {WS_KV}
    s_add_u32 s54, s54, s{sT}
    s_add_u32 s{sT}, s{sOdd}, 16
    s_lshl_b32 s55, 1, s{sT}
    """)
    pf_w1 = f"""
    s_lshr_b32 s{sT}, s2, 3
    s_lshl_b32 s{sT}, s{sT}, 2
    s_add_u32 s{sT}, s{sT}, s{sWave}
    v_lshrrev_b32 v{vE+2}, 3, v{vL}
    v_mul_u32_u24 v{vE+3}, 3584, v{vE+2}
    v_and_b32 v{vE+4}, 7, v{vL}
    v_lshl_add_u32 v{vE+3}, v{vE+4}, 7, v{vE+3}
    s_mul_i32 s{sT2}, s{sT}, {4*3584}
    s_lshr_b32 s{sT3}, s{sCg}, 2
    s_mul_i32 s{sT3}, s{sT3}, 896
    s_add_u32 s{sT2}, s{sT2}, s{sT3}
    s_mov_b64 exec, 0x7f7f7f7f
    buffer_load_dword v{vE+6}, v{vE+3}, s[28:31], s{sT2} offen
    s_mov_b64 exec, -1
    """
    pf_band = bandsrd + f"""
    v_lshrrev_b32 v{vE+2}, 1, v{vL}
    v_lshlrev_b32 v{vE+2}, 10, v{vE+2}
    v_and_b32 v{vE+4}, 1, v{vL}
    v_lshl_add_u32 v{vE+2}, v{vE+4}, 7, v{vE+2}
    s_add_u32 s{sT2}, s{sBand}, 96
    s_cmp_lg_u32 s{sOdd}, 0
    s_cselect_b32 s36, s4, s36
    s_cselect_b32 s37, s5, s37
    s_cselect_b32 s38, s6, s38
    s_cselect_b32 s{sT}, s{sT2}, s{sT}
    s_lshl_b32 s{sT}, s{sT}, 14
    s_lshl_b32 s{sT2}, s{sWave}, 8
    s_add_u32 s{sT}, s{sT}, s{sT2}
    s_mov_b64 exec, 0xffffffff
    buffer_load_dword v{vE+7}, v{vE+2}, s[36:39], s{sT} offen
    s_mov_b64 exec, -1
    """
    addr_regs = [vXA, vXA + 1, vXA + 2, vXA + 3, vPA, vPA + 1, vSA]
    PD = 6
    def silu_ep(acc, dst):
        f = [f"s_mov_b32 s{sT3}, {f32(-1.4426950408889634)}"]
        for h in range(2):
            for j in range(8): f.append(f"v_mul_f32 v{vE+j}, s{sT3}, v{acc+8*h+j}")
            for j in range(8): f.append(f"v_exp_f32 v{vE+j}, v{vE+j}")
            for j in range(8): f.append(f"v_add_f32 v{vE+j}, 1.0, v{vE+j}")
            for j in range(8): f.append(f"v_rcp_f32 v{vE+j}, v{vE+j}")
            for j in range(8): f.append(f"v_mul_f32 v{acc+8*h+j}, v{acc+8*h+j}, v{vE+j}")
        for j in range(8): f.append(f"v_cvt_pk_bf16_f32 v{dst+j}, v{acc+2*j}, v{acc+2*j+1}")
        return f
    class CS: pass
    S = CS()
    def lds_addr(out, reg, byte):
        w = S.win[reg]
        if not (0 <= byte - w <= 65535 - 512):
            nw_ = (byte // 32768) * 32768
            out.append(f"v_add_u32 v{reg}, {nw_ - w}, v{reg}" if nw_ - w >= 0 else f"v_subrev_u32 v{reg}, {w - nw_}, v{reg}")
            S.win[reg] = nw_; w = nw_
        return byte - w
    def units(odd):
        U = []
        for st in range(8):
            for s in range(4):
                ks = st * 4 + s
                U.append(dict(st=st, ks=ks, acc=2, kind="single", base=slot(st) + BO + s * 1024, swap=True, x=True))
                for nt in range(2):
                    U.append(dict(st=st, ks=ks, acc=nt, kind="pair", nt=nt, base=slot(st) + AO + s * 2048))
        p2 = [3, 2, 0, 1]
        for t in range(3 if odd else 4):
            for ks in range(32):
                if odd and t == 2:
                    U.append(dict(st=10, ks=ks, acc=p2[t], kind="single", base=slot(10) + ks * 1024))
                else:
                    st = 8 + 2 * (t // 2) + ks // 16
                    U.append(dict(st=min(st, 10), ks=ks, acc=p2[t], kind="pair", nt=t % 2, base=slot(st) + (ks % 16) * 2048))
        for i, u in enumerate(U): u["i"] = i
        return U
    QB = P("qb", 44)
    fchk = {}
    def emit_read(out, u):
        b = u["st"]
        if b not in S.bd:
            out.append("s_barrier"); S.bd.add(b)
        if u.get("x"):
            s = u["ks"] % 4
            off = lds_addr(out, vXA + s, slot(u["st"]) + XO)
            out.append(f"ds_read_b128 {vr(vX+4*u['ks'],4)}, v{vXA+s} offset:{off}")
            S.lq.issue(("x", u["ks"]))
        w = vW[u["i"] % NW]
        r, d = (vPA + u["nt"], 512) if u["kind"] == "pair" else (vSA, 256)
        off = lds_addr(out, r, u["base"])
        out.append(f"ds_read_b64_tr_b16 {vr(w,2)}, v{r} offset:{off}"); S.lq.issue(("w", u["i"]))
        out.append(f"ds_read_b64_tr_b16 {vr(w+2,2)}, v{r} offset:{off+d}"); S.lq.issue(("w", u["i"]))
    def group(u, U):
        g = []
        tags = {("w", u["i"]), ("x", u["ks"])} if u["i"] < 96 else {("w", u["i"])}
        if u["i"] % 2 == 0 and u["i"] + 1 < len(U): tags.add(("w", u["i"] + 1))
        w = S.lq.need(tags)
        if w: g.append(w)
        acc = vAcc[u["acc"]]; cc = "0" if u["ks"] == 0 else vr(acc, 16)
        wr = vr(vW[u["i"] % NW], 4); xr = vr(vX + 4 * u["ks"], 4)
        A, B = (xr, wr) if u.get("swap") else (wr, xr)
        g.append(f"v_mfma_f32_32x32x16_bf16 {vr(acc,16)}, {A}, {B}, {cc}")
        if u["i"] + PD < len(U): emit_read(g, U[u["i"] + PD])
        return g
    lines = lambda s: [x.strip() for x in s.strip("\n").split("\n")]
    tokA = Asm(); token_issue(tokA, vCt)
    tokB = Asm(); token_finish(tokB, vCt, "s_waitcnt vmcnt(0)")
    fchk[QB] = ["s_waitcnt vmcnt(0)"] + flag_store(vCt, vCt + 2, sFl) + ([SP.line(5), "s_waitcnt lgkmcnt(0)"] if FS and SP.on else [])
    hdst = f"""
    s_mul_i32 s{sT}, s{sTT}, {112*1024}
    s_add_u32 s{sT}, s{sT}, {WS_H}
    s_lshl_b32 s{sSA}, s{sFA}, 11
    s_add_u32 s{sSA}, s{sSA}, s{sT}
    s_lshl_b32 s{sSB}, s{sFB}, 11
    s_add_u32 s{sSB}, s{sSB}, s{sT}
    """
    def hs1(base, sreg, off): return f"buffer_store_dwordx4 {vr(base,4)}, v{vL16}, {WS}, s{sreg} offen offset:{off}{SC}"
    def front(odd):
        U = units(odd)
        S.win = {r: 0 for r in addr_regs}; S.lq = Q("lgkmcnt", 15); S.bd = set()
        pre = []
        for i in range(PD): emit_read(pre, U[i])
        G = []
        for u in U:
            g = group(u, U); i = u["i"]
            if "noc" in exp and i < 90: g = [x for x in g if "s_barrier" in x or x.startswith("v_add") or x.startswith("v_subrev")]
            if "nom" in exp and i < 90: g = [x for x in g if "mfma" not in x]
            if i == P("pw", 12) and "nopw" not in exp: g += lines(pf_w1)
            if i == P("pb", 40) and "nopb" not in exp and not RBAL: g += lines(pf_band)
            if i == 60: g += [x.strip() for x in tokA.lines]
            if i == 92: g += [x.strip() for x in tokB.lines]
            if i == 95 and SP.on: g += [SP.line(1), S.lq.drain()]
            if F2 and i in (96 + 31, 96 + 57): g += [SP.line(6 if i == 96 + 31 else 7), S.lq.drain()]
            G.append(g)
        G[0] = pre + G[0]
        a2 = vAcc[2]
        f = [f"s_cmp_lg_u32 s{sOdd}, 0", f"s_cselect_b32 s{sT3}, 1.0, {f32(QSCALE)}"]
        for j in range(8): f.append(f"v_cvt_pk_bf16_f32 v{a2+j}, v{a2+2*j}, v{a2+2*j+1}")
        f += [f"buffer_store_dwordx4 {vr(a2,4)}, v{vVO}, {WS}, s53 offen{SC}",
              f"buffer_store_dwordx4 {vr(a2+4,4)}, v{vVO}, {WS}, s53 offen offset:512{SC}"]
        for tq in range(2):
            acc = vAcc[tq]; pk = vPk if tq == 0 else vE
            for j in range(16): f.append(f"v_mul_f32 v{acc+j}, s{sT3}, v{acc+j}")
            for j in range(8): f.append(f"v_cvt_pk_bf16_f32 v{pk+j}, v{acc+2*j}, v{acc+2*j+1}")
            f.append(f"buffer_store_dwordx4 {vr(pk,4)}, v{vL16}, {WS}, s54 offen{SC}")
            f.append("s_add_u32 s54, s54, s55")
            f.append(f"buffer_store_dwordx4 {vr(pk+4,4)}, v{vL16}, {WS}, s54 offen{SC}")
            f.append("s_add_u32 s54, s54, s55")
        if FS and SP.on: f += [SP.line(4), "s_waitcnt lgkmcnt(0)"]
        spread(G, f, 96 + 2, 96 + 9)
        spread(G, silu_ep(vAcc[3], vHA), 96 + 35, 96 + 63)
        spread(G, silu_ep(vAcc[2], vHA + 8), 96 + 67, 96 + 95)
        if not odd: spread(G, silu_ep(vAcc[0], vHB), 96 + 99, 96 + 127)
        G[96 + QB] += fchk[QB]
        G[96 + 63].append("s_barrier")
        G[96 + 20] += lines(hdst)
        if HY:
            for q in range(2): G[96 + 66 + 12 * q].append(hs1(vHA + 4 * q, sSA, q * 1024))
            if not odd:
                for q in range(2): G[96 + 98 + 12 * q].append(hs1(vHA + 8 + 4 * q, sSA, 2048 + q * 1024))
        if HX:
          for q in range(2): G[96 + 65 + 2 * q].append(hs1(vHA + 4 * q, sSA, q * 1024))
        if HX and not odd:
            for q in range(2): G[96 + 96 + 2 * q].append(hs1(vHA + 8 + 4 * q, sSA, 2048 + q * 1024))
        return G
    Ge = front(False); Go = front(True)
    ncom = 0
    while Ge[ncom] == Go[ncom]: ncom += 1
    for g in Ge[:ncom]:
        for x in g: emit(c, x)
    c(f"s_cmp_lg_u32 s{sTy}, 0")
    c("s_cbranch_scc1 L_codd")
    ce = Asm()
    for g in Ge[ncom:]:
        for x in g: emit(ce, x)
    SP.st(ce, 2)
    ce(attdec)
    ce("s_nop 0")
    for q in range(2 if HX else 0): ce(hs1(vHB + 4 * q, sSB, q * 1024))
    for x in silu_ep(vAcc[1], vHB + 8): ce(x)
    for q in range(2 if HX else 0): ce(hs1(vHB + 8 + 4 * q, sSB, 2048 + q * 1024))
    ce("s_branch L_attC")
    co = Asm()
    co.label("L_codd")
    for g in Go[ncom:]:
        for x in g: emit(co, x)
    SP.st(co, 2)
    co(attdec)
    co("s_nop 0")
    for q in range(2 if HX or HY else 0): co(hs1(vHA + 8 + 4 * q, sSA, 2048 + q * 1024))
    for x in silu_ep(vAcc[0], vHB): co(x)
    for q in range(2 if HX else 0): co(hs1(vHB + 4 * q, sSB, q * 1024))
    vL16 = 1; vKA = 4; vVA = 3; vT = 5; vT2 = 6; vM = 7
    vQ = 8; vK = [12, 16]; VB3 = 'vb' in exp; NVB = 3 if VB3 else 2
    vV = [[20, 24], [28, 32], [56, 248]]; vP = 36; vS = [60, 76]; vO = 92
    vFA = 108; NFB = 4
    vFB = [44, 152, 164, 140]
    vWo = 176
    vGq = 240; vGf = 241; vTk2 = 242
    vPl = 246; vPo = 252; vVB = 253
    sVM = 30; sW0 = 24; sW1 = 25; sH = 26; sD = 27; sWo = 28
    sLK = 20; sSK = 21; sX = 22
    NT = 64
    B1, B2 = NE - 2, 42
    PI, PT, F0 = P("pi", 16), P("pt", 18), P("fz", 21)
    setup = f"""
    v_lshlrev_b32 v{vL16}, 4, v{vL}
    v_mov_b32 v{vTk2}, s{sTok}
    v_mov_b32 v{vTk2+1}, s{sTok+1}
    v_mov_b32 v{vTk2+2}, 0
    s_lshr_b32 s{sD}, s{sWave}, 1
    s_mul_i32 s{sT3}, s{sD}, {28*1024}
    s_mul_i32 s{sW0}, s{sNb}, {2*144*1024}
    s_add_u32 s{sW0}, s{sW0}, {WS_W}
    s_lshl_b32 s{sT}, s{sD}, 13
    s_add_u32 s{sWo}, s{sW0}, s{sT}
    s_add_u32 s{sW0}, s{sW0}, s{sT3}
    s_add_u32 s{sW0}, s{sW0}, {32*1024}
    s_add_u32 s{sW1}, s{sW0}, {144*1024}
    s_lshl_b32 s{sH}, s{sHead}, 1
    s_and_b32 s{sT2}, s{sWave}, 1
    s_add_u32 s{sTT}, s{sH}, s{sT2}
    s_mul_i32 s{sH}, s{sTT}, {112*1024}
    s_add_u32 s{sH}, s{sH}, s{sT3}
    s_add_u32 s{sH}, s{sH}, {WS_H}
    v_add_u32 v{vKA}, {KE}, v{vL16}
    v_and_b32 v{vT}, 15, v{vL}
    v_lshlrev_b32 v{vT}, 4, v{vT}
    v_and_b32 v{vT2}, 32, v{vL}
    v_lshlrev_b32 v{vT2}, 3, v{vT2}
    v_add_u32 v{vVA}, v{vT}, v{vT2}
    v_add_u32 v{vVB}, {VM}, v{vVA}
    v_add_u32 v{vVA}, {VE}, v{vVA}
    s_mov_b32 s{sVM}, 0x0000ffff
    s_mov_b32 s{sVM+1}, 0x0000ffff
    s_mov_b32 s{sT}, 0x3f803f80
    v_and_b32 v{vT}, 27, v{vL}
    v_cmp_eq_u32 vcc, 16, v{vT}
    v_mov_b32 v{vT2}, s{sT}
    s_lshl_b32 s{sT}, s{sWave}, 10
    v_cndmask_b32 v{vT}, 0, v{vT2}, vcc
    v_add_u32 v{vT2}, s{sT}, v{vKA}
    """ + "".join(f"v_mov_b32 v{vV[b][g]+j}, v{vT}\n" for b in range(NVB) for g in range(2) for j in range(4))
    pofs = f"""
    s_lshr_b32 s{sT}, s{sNb}, 1
    s_lshl_b32 s{sT}, s{sT}, 14
    s_add_u32 s{sT}, s{sT}, {FW - WS_F}
    s_mul_i32 s{sT2}, s{sD}, 28
    s_add_u32 s{sT2}, s{sT2}, 32
    v_add_u32 v{vPo}, s{sT2}, v{vL}
    v_and_b32 v{vPo}, 127, v{vPo}
    v_lshlrev_b32 v{vPo}, 7, v{vPo}
    v_add_u32 v{vPo}, s{sT}, v{vPo}
    v_lshlrev_b32 v{vM}, 7, v{vL}
    s_lshl_b32 s{sT2}, s{sD}, 10
    s_add_u32 s{sT}, s{sT}, s{sT2}
    s_sub_u32 s{sT}, s{sT}, {28*128}
    s_mov_b32 exec_lo, 0xf0000000
    s_mov_b32 exec_hi, 0x0000000f
    v_add_u32 v{vPo}, s{sT}, v{vM}
    s_lshl_b32 s{sT}, s{sTT}, 11
    s_add_u32 s{sT}, s{sT}, {FH - WS_F - 36*128}
    s_mov_b32 exec_lo, 0
    s_mov_b32 exec_hi, 0x000ffff0
    v_add_u32 v{vPo}, s{sT}, v{vM}
    s_mov_b64 exec, -1
    s_lshl_b32 s{sT}, s{sTT}, 7
    s_add_u32 s{sT}, s{sT}, {FG - WS_F}
    v_writelane_b32 v{vPo}, s{sT}, 52
    s_lshl_b32 s{sT}, s{sQb}, 7
    s_add_u32 s{sT}, s{sT}, {FG - WS_F}
    v_writelane_b32 v{vPo}, s{sT}, 53
    """
    class TS: pass
    X = TS()
    def readK(t, i):
        if i < NE: t(f"ds_read_b128 {vr(vK[i%2],4)}, v{vKA} offset:{i*1024}")
        elif i < NK: t(f"ds_read_b128 {vr(vK[i%2],4)}, v{vKA} offset:{KM-KE+(i-NE)*1024}")
        else: t(f"ds_read_b128 {vr(vK[i%2],4)}, v{vL16} offset:{KL+(i-NK)*1024}")
        X.lq.issue(("k", i))
    def readV(t, i):
        if VB3 and i > 0:
            if i % 2 == 0: return
            tiles = [x for x in (i, i + 1) if x < NT]
        else: tiles = [i]
        if i in (21, 22) and not X.vsw:
            t(f"v_subrev_u32 v{vVA}, {VE - VL}, v{vVA}"); X.vsw = True
        t(f"s_mov_b64 exec, s[{sVM}:{sVM+1}]")
        for i in tiles:
            r, o = (vVA, i * 1024) if i < NE else ((vVB, (i - NE) * 1024) if i < NV else (vVA, (i - NV) * 1024))
            t(f"ds_read_b128 {vr(vV[i%NVB][0],4)}, v{r} offset:{o}"); X.lq.issue(("v", i, 0))
            t(f"ds_read_b128 {vr(vV[i%NVB][1],4)}, v{r} offset:{o+512}"); X.lq.issue(("v", i, 1))
        t(f"s_mov_b64 exec, -1")
    def mS(t, i):
        t(X.lq.need({("k", i), "q"} | (set() if "ow" in exp else {("v", i - 1, 0), ("v", i - 1, 1)})))
        t(f"v_mfma_f32_32x32x16_bf16 {vr(vS[i%2],16)}, {vr(vK[i%2],4)}, {vr(vQ,4)}, 0")
    def mPV(t, i, g, first=False):
        t(X.lq.need({("v", i, g)}))
        cc = "0" if first else vr(vO, 16)
        t(f"v_mfma_f32_32x32x16_bf16 {vr(vO,16)}, {vr(vV[i%NVB][g],4)}, {vr(vP+4*g,4)}, {cc}")
    FE = P("fe", 64); SO = P("so", 0)
    ntile = FE - F0
    fs = [0] * NT
    for n in range(56): fs[F0 + n * ntile // 56] += 1
    assert max(fs) <= 2
    floads = [(j, w) for j in range(28) for w in (0, 2, 1)]
    def fload(t, j, which):
        b = vFB[j % NFB] + 4 * which
        s = (sW0, sW1, sH)[which]
        if "xl0" in exp or ("xl2" in exp and which == 1): return
        t(f"buffer_load_dwordx4 {vr(b,4)}, v{vL16}, {WS}, s{s} offen offset:{(j%4)*1024}{'' if ('wl1' in exp and which < 2) else ' sc1'}")
        if j % 4 == 3: t(f"s_add_u32 s{s}, s{s}, 4096")
        X.vq.issue(("f", j, which))
    def emit_floads(t, k):
        for _ in range(k):
            if X.nfl >= len(floads): return
            j, w = floads[X.nfl]
            if j >= NFB and X.nf < 2 * (j - NFB) + (1 if w == 0 else 2): return
            fload(t, j, w); X.nfl += 1
    def fmfma(t):
        n = X.nf; j, i = n // 2, n % 2
        t(X.vq.need({("f", j, i), ("f", j, 2)}))
        b = vFB[j % NFB]
        cc = "0" if j == 0 else vr(vFA + 16 * i, 16)
        if "xm" not in exp: t(f"v_mfma_f32_32x32x16_bf16 {vr(vFA+16*i,16)}, {vr(b+4*i,4)}, {vr(b+8,4)}, {cc}")
        X.nf += 1
    def woload(t, k):
        if k == 8: t(f"s_add_u32 s{sWo}, s{sWo}, {144*1024 - 8192}")
        t(f"buffer_load_dwordx4 {vr(vWo+4*k,4)}, v{vL16}, {WS}, s{sWo} offen offset:{(k%4)*1024}{'' if 'wl1' in exp else ' sc1'}")
        if k % 4 == 3: t(f"s_add_u32 s{sWo}, s{sWo}, 4096")
        X.vq.issue("wo")
    JN = P("jn", 14)
    WO0 = P("wo", 28)
    pr = {0: 3, P("pa", 26): 2, P("pb2_", 36): 1, B2 - 1: 0, B2: 3, P("pd", 55): 2, P("pe", 60): 1, P("pf", 62): 0}
    prC = dict(pr); prL = dict(pr)
    if KB1:
        prC.update({6: 2, 8: 1, 9: 0, B1: 3}); prL.update({6: 2, 8: 1, 9: 0, B1: 3})
    if "pl" in exp: prC[0] = 2; pr[JN] = 3
    if "pz" in exp:
        if not KB1:
            for d in (prC, prL): d.update({JN * 1 // 4 + 1: 2, JN * 2 // 4 + 1: 1, JN * 3 // 4 + 1: 0})
        else:
            for d in (prC, prL):
                for k in (6, 8, 9): del d[k]
                d.update({3: 2, 6: 1, 9: 0})
        pr[JN] = 3
    assert PI - 2 >= JN
    def tile(t, i, hook, pr=pr):
        Sx = vS[i % 2]
        E = lambda j: t(f"v_exp_f32 v{Sx+j}, v{Sx+j}")
        C = lambda j: t(f"v_cvt_pk_bf16_f32 v{vP+j}, v{Sx+2*j}, v{Sx+2*j+1}")
        if TSL and i in TSL and i < JN: SP.st(t, [1, 2, 4, 5, 6, 7][TSL.index(i)]); t(X.lq.drain())
        if i in pr: t(f"s_setprio {pr[i]}")
        if i + 1 < NT: mS(t, i + 1)
        if i + 2 < NT: readK(t, i + 2)
        if i == 0: t("s_nop 7")
        if fs[i]:
            E(0); E(1); E(2); C(0); E(3)
            mPV(t, i - 1, 1)
            if i + 1 < NT: readV(t, i + 1)
            E(4); C(1); E(5); E(6); C(2); E(7)
            fmfma(t)
            emit_floads(t, 1)
            E(8); C(3); E(9); E(10); E(11); C(4)
            mPV(t, i, 0)
            emit_floads(t, 1)
            hook(t, i)
            E(12); C(5); E(13)
            if fs[i] > 1:
                fmfma(t); emit_floads(t, 1)
            E(14); E(15); C(6)
            if i == NT - 1: t(f"v_sub_f32 v{vGf}, 1.0, v{vGf}")
            C(7)
        else:
            E(0); E(1); E(2); C(0); E(3); E(4); C(1)
            if i > 0: mPV(t, i - 1, 1)
            if i + 1 < NT: readV(t, i + 1)
            E(5); E(6); C(2); E(7); E(8); C(3); E(9); E(10)
            mPV(t, i, 0, first=(i == 0))
            hook(t, i)
            E(11); C(4); E(12); C(5); E(13); E(14); E(15); C(6)
            if i == NT - 1: t(f"v_sub_f32 v{vGf}, 1.0, v{vGf}")
            C(7)
    def head(t, isL):
        X.vq = Q("vmcnt", 63); X.lq = Q("lgkmcnt", 15); X.nf = 0; X.nfl = 0; X.vsw = False
        t(setup)
        if isL:
            t(f"""
            s_sub_u32 s{sT}, s{sWave}, 4
            s_mul_i32 s{sLK}, s{sT}, 5120
            s_add_u32 s{sSK}, s{sKV}, s{sLK}
            """)
        t("s_barrier")
        SP.st(t, 3)
        if SP.on: t("s_waitcnt lgkmcnt(0)")
        t(f"ds_read_b128 {vr(vQ,4)}, v{vT2} offset:{QE-KE}"); X.lq.issue("q")
        readK(t, 0); readK(t, 1); readV(t, 0)
        mS(t, 0)
    tC = Asm(); tC.label("L_attC")
    head(tC, False)
    HS = P("hs", 1)
    def hookC(t, i):
        k = -1 if HX or HY else i - HS
        if HY and i in (HS, HS + 2): t(hs1(vHB + 2 * (i - HS), sSB, (i - HS) * 512))
        if HY and i == HS + 4:
            t(f"s_cmp_lg_u32 s{sTy}, 0")
            t("s_cbranch_scc1 L_noh4")
            for q in range(2): t(hs1(vHB + 8 + 4 * q, sSB, (2 + q) * 1024))
            t.label("L_noh4")
        if k in (0, 1):
            for q in range(2): t(hs1(vHA + 8 * k + 4 * q, sSA, (2 * k + q) * 1024))
        if k == 2:
            for q in range(2): t(hs1(vHB + 4 * q, sSB, q * 1024))
        if k == 3:
            t(f"s_cmp_lg_u32 s{sTy}, 0")
            t("s_cbranch_scc1 L_noh4")
            for q in range(2): t(hs1(vHB + 8 + 4 * q, sSB, (2 + q) * 1024))
            t.label("L_noh4")
        if i == P("hf", 8 if HX else JN - 1):
            t("s_waitcnt vmcnt(0)")
            for x in flag_store(vTk2, vTk2 + 2, sFl2): t(x)
            if PS: SP.st(t, 1); t(X.lq.drain())
    for i in range(JN):
        if i == B1:
            if KB1: tC("s_barrier")
            if SP.on and not FS and not TSL: SP.st(tC, 4); tC(X.lq.drain())
        tile(tC, i, hookC, prC)
    tC("s_branch L_join")
    lqC = list(X.lq.q)
    tL = Asm(); tL.label("L_attL")
    head(tL, True)
    dm = []
    for kv, n in ((0, 5), (1, 6)):
        for j in range(n):
            Lx = []
            if j % 4 == 0:
                Lx += [f"s_add_u32 s{sX}, s{sLK}, {(KL, VL)[kv] + j*1024}", f"s_mov_b32 m0, s{sX}",
                       f"s_add_u32 s{sX}, s{sSK}, {(NK*1024, 65536 + NV*1024)[kv] + j*1024}"]
            Lx.append(f"buffer_load_dwordx4 v{vL16}, {WS}, s{sX} offen offset:{(j%4)*1024} sc1 lds")
            dm.append(("c2", Lx))
    def emit_dma(t, n):
        while n > 0 and dm:
            tag, Lx = dm.pop(0)
            for x in Lx: t(x)
            X.vq.issue(tag); n -= 1
    D0 = P("dz", 2)
    def hookL(t, i):
        if i >= D0: emit_dma(t, 2 if JN - i <= len(dm) - 1 else 1)
        if i == P("ws", 1) and not HX:
            assert i < D0
            t(f"s_cmp_lg_u32 s{sDone}, 0")
            t("s_cbranch_scc1 L_now")
            wst(t, vL16)
        if i == P("wf", JN - 1) and not HX:
            for x in flag_check(vTk2, sFl2, block=True, stamp=(1 if PS else None), cnt=len(X.vq.q)): emit(t, x)
    for i in range(JN):
        if i == B1 and KB1:
            tL(f"s_waitcnt vmcnt({len(X.vq.q)})")
            tL("s_barrier")
        if i == B1 and SP.on and not FS and not TSL: SP.st(tL, 4); tL(X.lq.drain())
        tile(tL, i, hookL, prL)
    assert not dm
    assert PS or lqC == X.lq.q
    t = Asm(); t.label("L_join")
    vq = X.vq
    vOf = 140
    oaddr = f"""
    s_lshl_b32 s{sH}, s{sTT}, 15
    s_lshl_b32 s{sT2}, s{sD}, 13
    s_add_u32 s{sH}, s{sH}, s{sT2}
    s_add_u32 s{sH}, s{sH}, {WS_O}
    s_add_u32 s{sW0}, s{sH}, 4096
    """
    def oload(L, k):
        L(f"buffer_load_dwordx4 {vr(vOf+4*k,4)}, v{vL16}, {WS}, s{sH if k < 4 else sW0} offen offset:{(k%4)*1024} sc1")
    def hookJ(t, i):
        if SO and i == SO:
            assert X.nf == 56
            t(oaddr)
        if SO and i in (SO, SO + 1):
            for k in range(4 * (i - SO), 4 * (i - SO) + 4): oload(t, k); vq.issue("o")
        if i == PI - 2: t(pofs)
        if i == PI:
            t(f"""
            s_mov_b32 s{sT2}, {WS_F}
            s_mov_b32 s4, -1
            s_mov_b32 s5, 0x003fffff
            s_mov_b64 exec, s[4:5]
            buffer_load_dwordx2 v[{vPl}:{vPl+1}], v{vPo}, {WS}, s{sT2} offen sc1
            s_mov_b64 exec, -1
            """)
            vq.issue("p")
        if i == PT:
            if PS: SP.st(t, 5); t(X.lq.drain())
            t(vq.need({"p"}))
            t("s_mov_b64 exec, s[4:5]")
            t(f"v_cmp_ne_u64 vcc, s[{sTok}:{sTok+1}], v[{vPl}:{vPl+1}]")
            t("s_mov_b64 exec, -1")
            t("s_nop 0")
            t("s_cbranch_vccnz L_pslow")
            t.label("L_pok")
            ool.label("L_pslow")
            poll(ool, [vPl], [vPo], sT2, mask="s[4:5]", sleep=P("sl", 8))
            ool("s_branch L_pok")
            if PS: SP.st(t, 6); t(X.lq.drain())
            t(f"""
            v_and_b32 v{vPo}, 31, v{vL}
            v_lshlrev_b32 v{vPo}, 2, v{vPo}
            s_lshl_b32 s{sT}, s{sTT}, 7
            s_add_u32 s{sT}, s{sT}, {WS_G}
            s_lshl_b32 s{sT2}, s{sQb}, 7
            s_add_u32 s{sT2}, s{sT2}, {WS_G}
            """)
        if PT <= i < F0: emit_floads(t, (9 + F0 - PT - 1) // (F0 - PT))
        if i == F0:
            t(f"buffer_load_dword v{vGf}, v{vPo}, {WS}, s{sT} offen sc1")
            t(f"buffer_load_dword v{vGq}, v{vPo}, {WS}, s{sT2} offen sc1")
            vq.issue("g"); vq.issue("g")
        if WO0 <= i < WO0 + 32 and (i - WO0) % 2 == 0: woload(t, (i - WO0) // 2)
    for i in range(JN, NT):
        if i == B2:
            t(vq.need({"c2"})); t("s_barrier")
        if TSL and i in TSL: SP.st(t, [1, 2, 4, 5, 6, 7][TSL.index(i)]); t(X.lq.drain())
        if SP.on and i in (B1, B2) and not FS and not PS and not TSL:
            SP.st(t, {B1: 4, B2: 5}[i]); t(X.lq.drain())
        if PS and i == 24: SP.st(t, 7); t(X.lq.drain())
        tile(t, i, hookJ)
    assert X.nf == 56 and X.nfl == len(floads)
    t("s_nop 1")
    mPV(t, NT - 1, 1)
    t("s_setprio 3")
    for r in range(12): t(f"v_mul_f32 v{vFA+r}, v{vFA+r}, v{vGf}")
    if not FS and not PS and not TSL: SP.st(t, 6)
    t(f"""
    v_add_f32 v{vT}, abs(v{vO}), abs(v{vO+1})
    v_add_f32 v{vT2}, abs(v{vO+2}), abs(v{vO+3})
    v_add_f32 v{vT}, v{vT}, abs(v{vO+4})
    v_add_f32 v{vT2}, v{vT2}, abs(v{vO+5})
    v_add_f32 v{vT}, v{vT}, abs(v{vO+6})
    v_add_f32 v{vT2}, v{vT2}, abs(v{vO+7})
    v_add_f32 v{vT}, v{vT}, v{vT2}
    s_mov_b32 s{sT}, 0x7f000000
    s_mov_b32 s{sT2}, {(127+80) << 23}
    s_mov_b32 s{sT3}, {(127-80) << 23}
    v_cmp_nle_f32 vcc, v{vT}, s{sT}
    v_cmp_nle_f32 s[20:21], v{vO+8}, s{sT2}
    v_cmp_nge_f32 s[22:23], v{vO+8}, s{sT3}
    s_nop 0
    s_or_b64 vcc, vcc, s[20:21]
    s_or_b64 vcc, vcc, s[22:23]
    s_cbranch_vccnz L_slow
    """)
    t.label("L_fin")
    vOf = 140; vAw = vS[0]
    t(f"""
    v_rcp_f32 v{vT}, v{vO+8}
    s_lshl_b32 s{sT}, s{sQb}, 15
    s_lshl_b32 s{sT2}, s{sHead}, 10
    s_add_u32 s{sT}, s{sT}, s{sT2}
    s_add_u32 s{sT}, s{sT}, {WS_O}
    v_mul_f32 v{vT}, v{vT}, v{vGq}
    """)
    for j in range(8): t(f"v_mul_f32 v{vO+j}, v{vO+j}, v{vT}")
    for j in range(4): t(f"v_cvt_pk_bf16_f32 v{vP+j}, v{vO+2*j}, v{vO+2*j+1}")
    RED = 65536
    t(f"""
    buffer_store_dwordx4 {vr(vP,4)}, v{vL16}, {WS}, s{sT} offen sc1
    s_mov_b32 s{sT4}, 0
    """)
    if not SO: t(oaddr)
    if not FS and not PS and not TSL: SP.st(t, 7)
    for r in range(12, 32): t(f"v_mul_f32 v{vFA+r}, v{vFA+r}, v{vGf}")
    t("s_barrier")
    if not SO:
        for k in range(8): oload(t, k)
    t(f"""
    s_and_b32 s{sT2}, s{sWave}, 1
    s_lshl_b32 s{sT2}, s{sT2}, 15
    s_add_u32 s{sT2}, s{sT2}, {RED}
    s_lshl_b32 s{sT3}, s{sD}, 13
    s_add_u32 s{sT3}, s{sT3}, s{sT2}
    v_add_u32 v{vT}, s{sT3}, v{vL16}
    s_lshl_b32 s{sT3}, s{sD}, 11
    s_add_u32 s{sT3}, s{sT3}, s{sT2}
    v_add_u32 v{vT2}, s{sT3}, v{vL16}
    v_and_b32 v{vPo}, 31, v{vL}
    v_lshlrev_b32 v{vPo}, 10, v{vPo}
    v_lshrrev_b32 v{vM}, 5, v{vL}
    v_lshl_add_u32 v{vPo}, v{vM}, 4, v{vPo}
    s_lshl_b32 s{sT}, s{sTT}, 15
    s_lshl_b32 s{sT2}, s{sNb}, 7
    s_add_u32 s{sT}, s{sT}, s{sT2}
    s_lshl_b32 s{sT2}, s{sD}, 5
    s_add_u32 s{sT}, s{sT}, s{sT2}
    s_mov_b64 s[20:21], -1
    v_lshlrev_b32 v{vP+4}, 10, v{vL}
    v_add_u32 v{vP+4}, 1020, v{vP+4}
    """)
    for k in range(8):
        t.label(f"L_o{k}")
        t(f"""
        s_waitcnt vmcnt({(7-k) if not (SO and k == 0) else 1})
        v_max3_u32 v{vM}, v{vOf+4*k}, v{vOf+4*k+1}, v{vOf+4*k+2}
        v_max_u32 v{vM}, v{vM}, v{vOf+4*k+3}
        v_cmp_eq_u32 vcc, -1, v{vM}
        s_nop 0
        s_and_b64 vcc, vcc, s[20:21]
        s_cbranch_vccnz L_ow{k}
        """)
        t.label(f"L_om{k}")
        for i in range(2):
            t(f"v_mfma_f32_32x32x16_bf16 {vr(vFA+16*i,16)}, {vr(vWo+32*i+4*k,4)}, {vr(vOf+4*k,4)}, {vr(vFA+16*i,16)}")
        ool.label(f"L_ow{k}")
        ool("s_waitcnt vmcnt(0)")
        if k < 7:
            regs = list(range(vOf + 4 * k + 4, vOf + 32))
            ool(f"v_max_u32 v{vM}, v{regs[0]}, v{regs[1]}")
            for q in range(2, len(regs), 2): ool(f"v_max3_u32 v{vM}, v{vM}, v{regs[q]}, v{regs[q+1]}")
            ool(f"""
            v_cmp_eq_u32 vcc, -1, v{vM}
            s_nop 1
            s_cbranch_vccz L_of{k}
            """)
            ool.label(f"L_ol{k}")
            ool(f"""
            s_sleep {P('os', 3)}
            s_mov_b64 exec, {(0xff << k) & 0xff}
            buffer_load_dword v{vM}, v{vP+4}, {WS}, s{sH} offen sc1
            s_add_u32 s{sT4}, s{sT4}, 1
            s_cmp_gt_u32 s{sT4}, {SPIN_MAX // 4}
            s_cselect_b64 s[20:21], 0, -1
            s_waitcnt vmcnt(0)
            v_cmp_eq_u32 vcc, -1, v{vM}
            s_mov_b64 exec, -1
            s_nop 0
            s_and_b32 s22, vcc_lo, s20
            s_bitcmp0_b32 s22, {k}
            s_cbranch_scc1 L_or{k}
            s_cmp_lg_u32 s22, {1 << k}
            s_cbranch_scc1 L_ol{k}
            """)
            ool.label(f"L_or{k}")
            for q in range(k, 8): oload(ool, q)
            ool(f"s_branch L_o{k}")
            ool.label(f"L_of{k}")
        if "pp" not in exp:
            ool(f"s_sleep {P('of', 1)}")
            oload(ool, k)
            ool(f"""
            s_add_u32 s{sT4}, s{sT4}, 1
            s_cmp_gt_u32 s{sT4}, {SPIN_MAX // 4}
            s_cselect_b64 s[20:21], 0, -1
            s_waitcnt vmcnt(0)
            s_branch L_o{k}
            """)
        else:
            D = P("pp", 2)
            for _ in range(D - 1):
                oload(ool, k); ool(f"s_sleep {P('of', 2)}")
            ool.label(f"L_og{k}")
            oload(ool, k)
            ool(f"""
            s_add_u32 s{sT4}, s{sT4}, 1
            s_cmp_gt_u32 s{sT4}, {SPIN_MAX // 4}
            s_cselect_b64 s[20:21], 0, -1
            s_waitcnt vmcnt({D - 1})
            v_max3_u32 v{vM}, v{vOf+4*k}, v{vOf+4*k+1}, v{vOf+4*k+2}
            v_max_u32 v{vM}, v{vM}, v{vOf+4*k+3}
            v_cmp_eq_u32 vcc, -1, v{vM}
            s_nop 0
            s_and_b64 vcc, vcc, s[20:21]
            s_cbranch_vccz L_om{k}
            s_branch L_og{k}
            """)
    SP.st(t, 8)
    if SP.on: t("s_waitcnt lgkmcnt(0)")
    t("s_nop 10")
    for u in range(8):
        if u == 4: t("s_nop 0")
        t(f"ds_write_b128 v{vT}, {vr(vFA+4*u,4)} offset:{u*1024}")
    t("s_waitcnt lgkmcnt(0)")
    t("s_barrier")
    vR = vOf
    if "pp" in exp: t("s_waitcnt vmcnt(0)")
    for p in range(4):
        for u in range(2):
            t(f"ds_read_b128 {vr(vR+16*u+4*p,4)}, v{vT2} offset:{p*8192+u*1024}")
    t("s_waitcnt lgkmcnt(0)")
    for u in range(2):
        b = vR + 16 * u
        for r in range(4): t(f"v_add_f32 v{b+r}, v{b+r}, v{b+4+r}")
        for r in range(4): t(f"v_add_f32 v{b+8+r}, v{b+8+r}, v{b+12+r}")
        for r in range(4): t(f"v_add_f32 v{b+r}, v{b+r}, v{b+8+r}")
    t(f"""
    v_cvt_pk_bf16_f32 v{vP}, v{vR}, v{vR+1}
    v_cvt_pk_bf16_f32 v{vP+1}, v{vR+2}, v{vR+3}
    v_cvt_pk_bf16_f32 v{vP+2}, v{vR+16}, v{vR+17}
    v_cvt_pk_bf16_f32 v{vP+3}, v{vR+18}, v{vR+19}
    s_nop 1
    v_permlane32_swap_b32 v{vP}, v{vP+2}
    v_permlane32_swap_b32 v{vP+1}, v{vP+3}
    buffer_store_dwordx4 {vr(vP,4)}, v{vPo}, {OUT}, s{sT} offen{" sc1" if "osc" in exp else (" nt" if "ont" in exp else "")}
    """)
    if SP.on:
        t("s_waitcnt vmcnt(0)")
        SP.st(t, 9)
        t("s_memrealtime s[60:61]")
        t("s_waitcnt lgkmcnt(0)")
        t("s_mov_b32 s94, s101")
        t("s_mov_b32 s96, s60")
        SP.flush(t, WS, sWave, 12, sT)
    t.label("L_end")
    t("s_endpgm")
    b = Asm()
    b.label("L_slow")
    Sx = vS[0]
    b(f"s_mov_b32 s{sT}, 0xff800000")
    b(f"v_mov_b32 v{vM}, s{sT}")
    b(f"v_mov_b32 v{vKA}, v{vL16}")
    b(f"v_add_u32 v{vVA}, {65536 - VL}, v{vVA}")
    for j in range(16): b(f"v_mov_b32 v{vO+j}, 0")
    b("s_mov_b32 s22, 0")
    b.label("L_slowloop")
    b(f"""
    buffer_load_dwordx4 {vr(vK[0],4)}, v{vKA}, {WS}, s{sKV} offen sc1
    s_mov_b64 exec, s[{sVM}:{sVM+1}]
    buffer_load_dwordx4 {vr(vV[0][0],4)}, v{vVA}, {WS}, s{sKV} offen sc1
    buffer_load_dwordx4 {vr(vV[0][1],4)}, v{vVA}, {WS}, s{sKV} offen offset:512 sc1
    s_mov_b64 exec, -1
    s_waitcnt vmcnt(0)
    v_mfma_f32_32x32x16_bf16 {vr(Sx,16)}, {vr(vK[0],4)}, {vr(vQ,4)}, 0
    v_add_u32 v{vKA}, 1024, v{vKA}
    v_add_u32 v{vVA}, 1024, v{vVA}
    s_nop 9
    v_max3_f32 v{vT}, v{Sx}, v{Sx+1}, v{Sx+2}
    v_max3_f32 v{vT}, v{vT}, v{Sx+3}, v{Sx+4}
    v_max3_f32 v{vT}, v{vT}, v{Sx+5}, v{Sx+6}
    v_max3_f32 v{vT}, v{vT}, v{Sx+7}, v{Sx+8}
    v_max3_f32 v{vT}, v{vT}, v{Sx+9}, v{Sx+10}
    v_max3_f32 v{vT}, v{vT}, v{Sx+11}, v{Sx+12}
    v_max3_f32 v{vT}, v{vT}, v{Sx+13}, v{Sx+14}
    v_max_f32 v{vT}, v{vT}, v{Sx+15}
    v_mov_b32 v{vT2}, v{vT}
    s_nop 1
    v_permlane32_swap_b32 v{vT}, v{vT2}
    s_nop 1
    v_max3_f32 v{vT}, v{vT}, v{vT2}, v{vM}
    v_sub_f32 v{vT2}, v{vM}, v{vT}
    v_exp_f32 v{vT2}, v{vT2}
    v_mov_b32 v{vM}, v{vT}
    """)
    for j in range(16): b(f"v_mul_f32 v{vO+j}, v{vO+j}, v{vT2}")
    for j in range(16): b(f"v_sub_f32 v{Sx+j}, v{Sx+j}, v{vM}")
    for j in range(16): b(f"v_exp_f32 v{Sx+j}, v{Sx+j}")
    b("s_nop 0")
    for j in range(8): b(f"v_cvt_pk_bf16_f32 v{vP+j}, v{Sx+2*j}, v{Sx+2*j+1}")
    b(f"""
    s_nop 1
    v_mfma_f32_32x32x16_bf16 {vr(vO,16)}, {vr(vV[0][0],4)}, {vr(vP,4)}, {vr(vO,16)}
    v_mfma_f32_32x32x16_bf16 {vr(vO,16)}, {vr(vV[0][1],4)}, {vr(vP+4,4)}, {vr(vO,16)}
    s_add_u32 s22, s22, 1
    s_cmp_lt_u32 s22, 64
    s_nop 11
    s_cbranch_scc1 L_slowloop
    s_branch L_fin
    """)
    check(a.lines + c.lines + ce.lines + tC.lines + t.lines, "even")
    check(a.lines + c.lines + co.lines + tC.lines, "odd")
    check(a.lines + l.lines + le.lines + tL.lines + t.lines, "loader")
    check(a.lines + l.lines + lo.lines + tL.lines, "loader_odd")
    check(b.lines + b.lines + t.lines[t.lines.index("L_fin:"):], "slow")
    nb = lambda L: sum(1 for x in L if "s_barrier" in x)
    print("barriers", nb(c.lines + ce.lines + tC.lines), nb(l.lines + le.lines + tL.lines), nb(c.lines + co.lines + tC.lines), nb(l.lines + lo.lines + tL.lines), nb(t.lines), "ncom", ncom, "fs", "".join(map(str, fs)))
    return khead(name) + "".join(x.text() for x in (a, l, le, lo, c, ce, co, tC, tL, t, b, ool)) + kd(name, 256, 102)

if __name__ == "__main__":
    import sys
    NAME = "gated_mix__softmax_full_mha__dense_activation_silu__prompt"
    ref = open(f"cdna_kernels/{NAME}.s.ref").read().split("\n")
    hdr = [x for x in ref if x.startswith(";") and "@launch" not in x and "Override launch" not in x and "grid=ceil" not in x]
    dst = sys.argv[1] if len(sys.argv) > 1 else f"cdna_kernels/{NAME}.s"
    ST = int(sys.argv[2]) if len(sys.argv) > 2 else 0
    aslist = ST > 0 or (len(sys.argv) > 4)
    out = "\n".join(hdr) + "\n"
    if aslist: out += f"; @launch kernel={NAME}_kernel grid=(256,1,1) block=(512,1,1) lds=163840\n"
    else: out += "; @launch grid=(256,1,1) block=(512,1,1) lds=163840\n"
    out += '.amdgcn_target "amdgcn-amd-amdhsa--gfx950"\n'
    out += gen(NAME + "_kernel", stamps=ST, exp=(sys.argv[3] if len(sys.argv) > 3 else ""))
    open(dst, "w").write(out)
    print("wrote", dst, len(out))
```
